```python
import torch

def _softmax(x, axis=-1):
    return torch.softmax(x, dim=axis)
def _gelu(x):
    return torch.nn.functional.gelu(x, approximate="tanh")
def _silu(x):
    return torch.nn.functional.silu(x)
def _sigmoid(x):
    return torch.sigmoid(x)
def _layernorm(x, axis=-1, eps=1e-5):
    m = x.mean(dim=axis, keepdim=True)
    v = x.var(dim=axis, keepdim=True, unbiased=False)
    return (x - m) / torch.sqrt(v + eps)
def _scatter_add(tgt, idx, src, axis=0):
    return tgt.clone().index_add_(axis, idx, src)
def _segment_sum(src, seg, n):
    out = torch.zeros((n,) + src.shape[1:], dtype=src.dtype)
    return out.index_add_(0, seg, src)
def _pad(x, pw):
    flat = tuple(v for pair in reversed(pw) for v in pair)
    return torch.nn.functional.pad(x, flat)

kernel_name = 'standalone__paged_block_table_kv_radixattention__decode'

def setup_inputs():

    _w = (lambda a: (lambda t: t.to(torch.bfloat16) if t.is_floating_point() else t)(torch.as_tensor(a)))
    B, H, Hkv, Dh = 4, 32, 32, 128
    Lk = 8192
    bs = 16
    nb = max(2, Lk // bs)
    P = max(1, nb // 2)
    n_phys = P + B * (nb - P)
    shared = torch.arange(P, dtype=torch.int64)
    priv = P + torch.arange(B * (nb - P), dtype=torch.int64).reshape(B, nb - P)
    bt = torch.cat([torch.tile(shared[None, :], (B, 1)), priv], dim=1)
    ctx = nb * bs - (torch.arange(1, B + 1, dtype=torch.int64) * 2654435761) % max(1, (nb * bs - P * bs) // 2)
    return {
        "q": _w((lambda *s: torch.randn(*s, dtype=torch.bfloat16) * 0.8)(B, H, Dh)),
        "k_cache": _w((lambda *s: torch.randn(*s, dtype=torch.bfloat16) * 0.8)(n_phys, bs, Hkv, Dh)),
        "v_cache": _w((lambda *s: torch.randn(*s, dtype=torch.bfloat16) * 0.05)(n_phys, bs, Hkv, Dh)),
        "block_table": _w(bt.to(torch.int64)),
        "ctx_lens": _w(torch.as_tensor(ctx).to(torch.int64)),
    }

def reference(q, k_cache, v_cache, block_table, ctx_lens):
    B, H, Dh = q.shape
    n_phys, bs, Hkv, _ = k_cache.shape
    nb = block_table.shape[1]
    Lk = nb * bs
    rep = H // Hkv
    k = k_cache[block_table].reshape(B, Lk, Hkv, Dh)
    v = v_cache[block_table].reshape(B, Lk, Hkv, Dh)
    k = (lambda x, n, axis: torch.repeat_interleave(x, n, dim=axis))(k, rep, axis=2)
    v = (lambda x, n, axis: torch.repeat_interleave(x, n, dim=axis))(v, rep, axis=2)
    scores = torch.einsum("bhd,bkhd->bhk", q, k) * (Dh ** -0.5)
    pos = torch.arange(Lk)
    valid = pos[None, :] < ctx_lens[:, None]
    scores = torch.where(valid[:, None, :], scores, -1e9)
    p = _softmax(scores, axis=-1)
    return torch.einsum("bhk,bkhd->bhd", p, v)
```

```python
import re

TRANS = ("v_exp_f32", "v_log_f32", "v_rcp_f32", "v_rsq_f32", "v_sqrt_f32", "v_sin_f32", "v_cos_f32")
_REG = re.compile(r"^(-|\|)?([vsa])(\d+)\|?$")
_RANGE = re.compile(r"^(-)?([vsa])\[(\d+):(\d+)\]$")


def regs_of(tok):
    tok = tok.strip()
    if tok.startswith("abs(") and tok.endswith(")"):
        tok = tok[4:-1]
    m = _REG.match(tok)
    if m:
        return {(m.group(2), int(m.group(3)))}
    m = _RANGE.match(tok)
    if m:
        return {(m.group(2), i) for i in range(int(m.group(3)), int(m.group(4)) + 1)}
    if tok == "vcc":
        return {("s", 106), ("s", 107)}
    if tok == "vcc_lo":
        return {("s", 106)}
    if tok == "vcc_hi":
        return {("s", 107)}
    if tok == "exec":
        return {("s", 126), ("s", 127)}
    if tok == "exec_lo":
        return {("s", 126)}
    if tok == "exec_hi":
        return {("s", 127)}
    if tok == "m0":
        return {("s", 124)}
    return set()


class Ins:
    __slots__ = ("text", "mn", "wr", "rd", "cls", "dpp", "states", "lanesel", "dpprd", "accrd")

    def __init__(self):
        self.wr = set()
        self.rd = set()
        self.cls = "other"
        self.dpp = False
        self.states = 1
        self.lanesel = set()
        self.dpprd = set()
        self.accrd = set()


def parse(text):
    ins = Ins()
    ins.text = text
    t = text.split(";")[0].strip()
    parts = t.split(None, 1)
    mn = parts[0]
    ins.mn = mn
    rest = parts[1] if len(parts) > 1 else ""
    ops = []
    cur = ""
    depth = 0
    for ch in rest:
        if ch in "[(":
            depth += 1
        if ch in "])":
            depth -= 1
        if ch == "," and depth == 0:
            ops.append(cur.strip())
            cur = ""
        else:
            cur += ch
    if cur.strip():
        ops.append(cur.strip())
    mods = ""
    if ops:
        sp = ops[-1].split(None, 1)
        ops[-1] = sp[0]
        if len(sp) > 1:
            mods = sp[1]
    base = mn
    for suf in ("_e32", "_e64", "_dpp", "_sdwa"):
        if base.endswith(suf):
            base = base[: -len(suf)]
    ins.mn = base
    ins.dpp = ("row_" in mods) or ("quad_perm" in mods) or ("wave_" in mods)
    R = [regs_of(o) for o in ops]
    if base == "s_nop":
        ins.cls = "nop"
        ins.states = int(ops[0], 0) + 1
        return ins
    if base.startswith("v_"):
        ins.cls = "valu"
        if base in TRANS:
            ins.cls = "trans"
        if base.startswith("v_dot"):
            ins.cls = "dot"
        if base.startswith("v_cmp"):
            ins.wr |= R[0]
            for r in R[1:]:
                ins.rd |= r
            if base.startswith("v_cmpx"):
                ins.wr |= regs_of("exec")
        elif base in ("v_readlane_b32", "v_readfirstlane_b32"):
            ins.wr |= R[0]
            ins.rd |= R[1]
            if len(R) > 2:
                ins.lanesel |= R[2]
                ins.rd |= R[2]
            ins.cls = "readlane"
        elif base == "v_writelane_b32":
            ins.wr |= R[0]
            ins.rd |= R[0] | R[1]
            ins.lanesel |= R[2]
            ins.rd |= R[2]
            ins.cls = "writelane"
        elif base.startswith("v_permlane"):
            ins.wr |= R[0] | R[1]
            ins.rd |= R[0] | R[1]
            ins.cls = "permlane"
        elif base in ("v_add_co_u32", "v_sub_co_u32", "v_subrev_co_u32"):
            ins.wr |= R[0] | R[1]
            for r in R[2:]:
                ins.rd |= r
        elif base in ("v_addc_co_u32", "v_subb_co_u32"):
            ins.wr |= R[0] | R[1]
            for r in R[2:]:
                ins.rd |= r
        else:
            ins.wr |= R[0]
            for r in R[1:]:
                ins.rd |= r
            if base in ("v_fmac_f32", "v_dot2c_f32_bf16", "v_pk_fmac_f16", "v_mac_f32"):
                ins.rd |= R[0]
                ins.accrd |= R[0]
            if base == "v_dot2_f32_bf16" and len(R) > 3:
                ins.accrd |= R[3]
            if base == "v_cndmask_b32" and len(ops) == 3:
                ins.rd |= regs_of("vcc")
            if ins.dpp and "bank_mask" in mods or "row_mask" in mods:
                ins.rd |= R[0]
        if ins.dpp and len(R) > 1:
            ins.dpprd |= R[1]
    elif base.startswith(("buffer_", "global_", "flat_", "scratch_")):
        ins.cls = "vmem"
        if "_load" in base and " lds" not in (" " + mods):
            ins.wr |= R[0]
            for r in R[1:]:
                ins.rd |= r
        elif "_atomic" in base:
            for r in R:
                ins.rd |= r
            if "sc0" in mods:
                ins.wr |= R[0]
            ins.cls = "vmem"
        elif "_store" in base:
            for r in R:
                ins.rd |= r
            ins.cls = "vstore"
            if base.endswith(("x3", "x4")):
                data = R[0] if base.startswith("buffer_") else R[1]
                ins.accrd = set(data)
        else:
            for r in R:
                ins.rd |= r
    elif base.startswith("ds_"):
        ins.cls = "ds"
        if "_read" in base or "bpermute" in base or "swizzle" in base or "_rtn" in base:
            ins.wr |= R[0]
            for r in R[1:]:
                ins.rd |= r
        else:
            for r in R:
                ins.rd |= r
    elif base.startswith("s_"):
        ins.cls = "salu"
        if base.startswith(("s_cmp", "s_cbranch", "s_branch", "s_waitcnt", "s_barrier", "s_endpgm", "s_setprio",
                            "s_sleep", "s_bitcmp")):
            for r in R:
                ins.rd |= r
        else:
            if R:
                ins.wr |= R[0]
            for r in R[1:]:
                ins.rd |= r
            if "saveexec" in base:
                ins.wr |= regs_of("exec")
    return ins


VALU_CLS = ("valu", "trans", "dot", "readlane", "writelane", "permlane")


def need_states(prod, cons):
    n = 0
    pv = prod.cls in VALU_CLS
    cv = cons.cls in VALU_CLS
    wr_v = {r for r in prod.wr if r[0] == "v"}
    wr_s = {r for r in prod.wr if r[0] == "s"}
    if pv:
        if wr_v:
            if cons.dpp and (wr_v & cons.rd):
                n = max(n, 2)
            if cons.cls == "permlane" and (wr_v & cons.rd):
                n = max(n, 2)
            if cons.cls == "readlane" and (wr_v & cons.rd):
                n = max(n, 1)
            if prod.cls == "trans" and (wr_v & (cons.rd | cons.wr)) and (cv or cons.cls in ("vmem", "vstore", "ds")):
                n = max(n, 1)
            if prod.cls == "dot" and (wr_v & (cons.rd | cons.wr)):
                same = cons.cls == "dot" and cons.mn == prod.mn
                only_acc = same and not (wr_v & (cons.rd - cons.accrd))
                if same and (wr_v & cons.accrd) and not _reads_as_ab(prod, cons):
                    n = max(n, 0)
                else:
                    n = max(n, 3)
        if wr_s:
            if cv and (wr_s & cons.rd):
                n = max(n, 2)
            if cv and (wr_s & cons.lanesel):
                n = max(n, 4)
            if cons.cls in ("vmem", "vstore") and (wr_s & cons.rd):
                n = max(n, 5)
            if cons.cls == "salu" and (wr_s & cons.rd):
                n = max(n, 1)
            if regs_of("exec") & wr_s:
                if cons.dpp:
                    n = max(n, 5)
                if cons.cls in ("readlane", "writelane", "permlane"):
                    n = max(n, 4)
    if prod.cls == "vstore" and prod.accrd:
        if (prod.accrd & cons.wr):
            n = max(n, 2 if cv else 1)
    if prod.cls == "salu" and (("s", 124) in prod.wr):
        if cons.cls in ("vmem",) and "lds" in cons.text:
            n = max(n, 1)
    return n


def _reads_as_ab(prod, cons):
    t = cons.text.split(";")[0].strip().split(None, 1)[1]
    ops = [o.strip() for o in t.split(",")]
    wr_v = {r for r in prod.wr if r[0] == "v"}
    ab = set()
    for o in ops[1:3]:
        ab |= regs_of(o.split()[0])
    return bool(wr_v & ab)


class Asm:
    def __init__(self):
        self.out = []
        self.hist = []
        self.nlabel = 0

    def raw(self, text):
        self.out.append(text)

    def comment(self, text):
        self.out.append("    ; " + text)

    def _pending(self, cons):
        need = 0
        dist = 0
        for p in reversed(self.hist):
            req = need_states(p, cons)
            if req > dist:
                need = max(need, req - dist)
            dist += p.states
            if dist >= 6:
                break
        return need

    def nop(self, n):
        while n > 0:
            k = min(n, 16)
            self._push("s_nop %d" % (k - 1))
            n -= k

    def _push(self, text):
        ins = parse(text)
        self.out.append("    " + text)
        self.hist.append(ins)
        if len(self.hist) > 12:
            self.hist.pop(0)
        return ins

    def __call__(self, text):
        ins = parse(text)
        if ins.mn.startswith(("s_cbranch", "s_branch")):
            self._settle()
        need = self._pending(ins)
        if need:
            self.nop(need)
        self._push(text)

    def _settle(self):
        need = 0
        dist = 0
        for p in reversed(self.hist):
            worst = 0
            if p.cls in VALU_CLS:
                if any(r[0] == "v" for r in p.wr):
                    worst = max(worst, 3 if p.cls == "dot" else 2)
                if any(r[0] == "s" for r in p.wr):
                    worst = max(worst, 5)
            if p.cls == "vstore" and p.accrd:
                worst = max(worst, 2)
            if p.cls == "salu" and (("s", 124) in p.wr):
                worst = max(worst, 1)
            if worst - 1 > dist:
                need = max(need, worst - 1 - dist)
            dist += p.states
            if dist >= 6:
                break
        if need:
            self.nop(need)

    def label(self, name):
        self._settle_label()
        self.out.append(name + ":")

    def _settle_label(self):
        pass

    def newlabel(self, base):
        self.nlabel += 1
        return "L_%s_%d" % (base, self.nlabel)

    def text(self):
        return "\n".join(self.out) + "\n"
```

```python
import sys, argparse, struct, math
sys.path.insert(0, "gen")
from asmlib import Asm

NAME = "standalone__paged_block_table_kv_radixattention__decode"

HEADER = """; Kernarg layout for this problem (64 bytes, ptrs only, base s[0:1]):
"""


def f32bits(x):
    return struct.unpack("<I", struct.pack("<f", x))[0]


def gen(D=3, ld="nt", fnum=4, stamps=0, lds_pad=84 * 1024, nopref=0, prio=0, nl=None, ncomb=4, slowb=0, qpos=0, bdelay=0, warm=0, pfpos=0, tail2=0, tail3=0, psets=1, pslp=0, tlbw=0, lead=0, deep=0):
    CACHE_BYTES = 1280 * 131072
    REG_O = 32 * 2048
    REGION = REG_O + 1024
    CTR_OFF = 0x400000
    LEAD = D - 1
    assert LEAD >= 1
    WAITN = 8 * (D - 1) + (D - 2)
    NL = 8 - D if nl is None else nl
    assert 0 <= NL <= 8 - D
    a = Asm()
    if tail3:
        tail2 = 1
        assert tail3 in (16, 32)
        ncomb = tail3

    sQ, sK, sV, sBT, sCTX, sOUT, sDBG, sWS = 8, 10, 12, 14, 16, 18, 20, 22
    KS, VS = 24, 28
    sCE = 32
    sW, sHG, sSPLIT = 36, 37, 38
    sC, sHI = 39, 40
    sN, sU, sSTAGE = 41, 42, 43
    sCUR, sOFF = 44, 45
    sNV = 46
    sTYPE, sSS = 50, 51
    sDESC = 60
    sNC, sDYN0, sEXH, sFOK, sNEW, sP, sCL = 64, 65, 66, 67, 68, 69, 70
    sNF = 71
    sSTOPN = 72
    sLOK = 73
    sQZ = 96
    sRECO, sREGO = 74, 75
    sLK, sX2 = 80, 81
    sDL, sLD = 82, 83
    WSRD = 76 if tail3 else 60

    def sp(x):
        return "s[%d:%d]" % (x, x + 1)

    vLANE = 1
    vOFF = 2
    vTOK, vNEG, vCA, vONE = 6, 7, 8, 9
    vT0, vT1 = 10, 11
    vQ = 12
    vO = 28
    vM = 60
    vL = 64
    vS = 68
    vA = 84
    vPB = 92
    vU = 100
    vW = 116
    vR = 148
    DM = D + 1 if deep else D
    if deep:
        assert D == 2 and qpos == 1 and not lead and not tail3 and stamps != 3
    vCLM = vR + 32 * DM
    vLA = vCLM + DM
    vINI = vLA + 1
    vZ = vINI + 1
    vPK = vZ + 1
    NV = vPK + 1
    vLW0, vLW1, vLR0, vLR1, vL16p, vSTM, vCD, vCD2, vCMa, vOAp = range(NV, NV + 10)
    if tail3:
        NV += 10
    vST = NV
    if stamps:
        NV += 1
    NV = max(NV, 160)
    assert NV <= 256

    def vr(x, n):
        return "v[%d:%d]" % (x, x + n - 1)

    def stamp(idx):
        if not stamps:
            return
        a("s_memrealtime s[100:101]")
        a("s_waitcnt lgkmcnt(0)")
        a("v_writelane_b32 v%d, s100, %s" % (vST, idx))

    L_FLAG, L_LIST = 0, 256
    L_ML = L_LIST + 2048 * 8
    L_OB = L_ML + 512
    LDS_USED = L_OB + 16 * 2048
    LDS_BYTES = max(LDS_USED, lds_pad)

    def issue(k, st=None):
        base = vR + 32 * k
        for i in range(4):
            a("buffer_load_dwordx4 %s, v%d, s[%d:%d], s%d offen %s" % (vr(base + 4 * i, 4), vOFF + i, KS, KS + 3, sOFF, ld))
            if st is not None:
                stamp(st + i)
        for i in range(4):
            a("buffer_load_dwordx4 %s, v%d, s[%d:%d], s%d offen %s" % (vr(base + 16 + 4 * i, 4), vOFF + i, VS, VS + 3, sOFF, ld))
            if st is not None:
                stamp(st + 4 + i)

    def dummyC(k):
        a("global_load_dword v%d, v%d, %s" % (vCLM + k, vZ, sp(sBT)))

    def ctx_load():
        a("s_load_dwordx4 s[%d:%d], %s, 0" % (sCE, sCE + 3, sp(sCTX)))

    def ctx_norm():
        a("s_mov_b32 s%d, 0" % sQZ)
        for b in range(4):
            a("s_cmp_le_i32 s%d, 0" % (sCE + b))
            a("s_cselect_b32 s3, %d, 0" % (1 << b))
            a("s_cselect_b32 s%d, 8192, s%d" % (sCE + b, sCE + b))
            a("s_or_b32 s%d, s%d, s3" % (sQZ, sQZ))
            a("s_min_i32 s%d, s%d, 8192" % (sCE + b, sCE + b))

    def get_consts(tag, ssmin):
        e0 = vU
        a("s_waitcnt lgkmcnt(0)")
        a.label("L_gc_spin%s" % tag)
        a("ds_read_b32 v%d, v%d offset:%d" % (e0, vZ, L_FLAG))
        a("s_waitcnt lgkmcnt(0)")
        a("v_readfirstlane_b32 s%d, v%d" % (sU, e0))
        a("s_cmp_eq_u32 s%d, 0" % sU)
        a("s_cbranch_scc1 L_gc_spin%s" % tag)
        a("s_sub_u32 s%d, s%d, 1" % (sU, sU))
        a("s_mul_i32 s%d, s%d, %d" % (sSS, sU, fnum))
        a("s_lshr_b32 s%d, s%d, 8" % (sSS, sSS))
        a("s_max_u32 s%d, s%d, %d" % (sSS, sSS, ssmin))
        a("s_lshl_b32 s%d, s%d, 5" % (sDYN0, sSS))
        if deep:
            a("s_sub_u32 s%d, s%d, s%d" % (sNC, sSS, sDL))
            a("s_sub_u32 s%d, s%d, s%d" % (sNF, sNC, sLD))
        else:
            a("s_sub_u32 s%d, s%d, %d" % (sNC, sSS, D + LEAD))
            a("s_sub_u32 s%d, s%d, %d" % (sNF, sNC, LEAD))

    a.raw(".amdgcn_target \"amdgcn-amd-amdhsa--gfx950\"")
    a.raw(".text")
    a.raw(".globl %s_kernel" % NAME)
    a.raw(".p2align 8")
    a.raw(".type %s_kernel,@function" % NAME)
    a.raw("%s_kernel:" % NAME)
    a("s_cmp_ge_u32 s2, 256")
    a("s_cbranch_scc1 L_exit2")
    if stamps:
        a("v_mov_b32 v%d, 0" % vST)
        stamp(0)
    a("s_load_dwordx16 s[8:23], s[0:1], 0")
    a("v_mov_b32 v%d, 0" % vZ)
    a("ds_write_b32 v%d, v%d offset:%d" % (vZ, vZ, L_FLAG))
    a("v_and_b32 v%d, 63, v0" % vLANE)
    a("v_lshrrev_b32 v%d, 6, v0" % vT0)
    a("v_readfirstlane_b32 s%d, v%d" % (sW, vT0))
    a("s_lshr_b32 s3, s2, 6")
    a("s_lshl_b32 s3, s3, 3")
    a("s_and_b32 s4, s2, 7")
    a("s_or_b32 s%d, s3, s4" % sSPLIT)
    a("s_bfe_u32 s%d, s2, 0x30003" % sHG)
    a("s_mov_b32 s%d, 0x%08x" % (sC, f32bits(128 ** -0.5 * math.log2(math.e))))
    a("s_mov_b32 s%d, 0xffff0000" % sHI)
    t0, t1, t2, t3 = vS, vS + 1, vS + 2, vS + 3
    a("v_lshlrev_b32 v%d, 4, v%d" % (t1, vLANE))
    a("s_lshl_b32 s3, s%d, 10" % sHG)
    a("v_add_u32 v%d, s3, v%d" % (t3, t1))
    a("s_lshl_b32 s4, s%d, 2" % sW)
    a("s_lshl_b32 s5, s4, 13")
    a("v_add_u32 v%d, s5, v%d" % (vOFF, t3))
    for i in range(1, 4):
        a("v_add_u32 v%d, %d, v%d" % (vOFF + i, i * 8192, vOFF))
    a("v_bfe_u32 v%d, v%d, 2, 1" % (t2, vLANE))
    a("v_bfe_u32 v%d, v%d, 3, 1" % (vTOK, vLANE))
    a("v_lshlrev_b32 v%d, 1, v%d" % (vTOK, vTOK))
    a("v_or3_b32 v%d, v%d, v%d, s4" % (vTOK, vTOK, t2))
    a("v_mov_b32 v%d, 0xff800000" % vNEG)
    a("v_mov_b32 v%d, 1" % vONE)
    vQo = vS + 6
    for b in range(1, 4):
        a("v_add_u32 v%d, %d, v%d" % (vQo + b - 1, b * 8192, t3))
    a("s_lshl_b32 s3, s%d, 3" % sHG)
    a("s_add_u32 s3, s3, s%d" % sW)
    a("s_lshl_b32 s3, s3, 8")
    a("s_add_u32 s3, s3, 0x%x" % CTR_OFF)
    a("v_mov_b32 v%d, s3" % vCA)
    a("s_lshl_b32 s3, s%d, 5" % sHG)
    a("v_mov_b32 v%d, s3" % vLA)
    vEK, vEB, vEI, vEP = vS + 10, vS + 11, vS + 12, vS + 13
    a("v_bfe_u32 v%d, v%d, 2, 3" % (vEK, vLANE))
    a("v_and_b32 v%d, 3, v%d" % (vEB, vLANE))
    vEA = vS + 9
    a("v_lshlrev_b32 v%d, 7, v%d" % (vEA, vEK))
    a("v_lshl_add_u32 v%d, v%d, 11, v%d" % (vEA, vEB, vEA))
    a("s_lshl_b32 s5, s%d, 2" % sSPLIT)
    a("v_add_u32 v%d, s5, v%d" % (vEA, vEA))
    a("s_waitcnt lgkmcnt(0)")
    a("s_barrier")
    stamp(1)
    a("s_cmp_eq_u32 s%d, 4" % sW)
    a("s_cbranch_scc1 L_builder")
    if prio:
        a("s_setprio %d" % prio)
    a("s_add_u32 s6, s%d, s5" % sBT)
    a("s_addc_u32 s7, s%d, 0" % (sBT + 1))
    for k in range(D):
        a("s_load_dword s%d, s[6:7], 0x%x" % (sDESC + k, 128 * k))
    if lead:
        a("s_load_dword s%d, s[6:7], 0x%x" % (sX2, 128 * D))
    if deep:
        a("s_load_dword s%d, s[6:7], 0x%x" % (sDESC + D, 128 * D))
    ctx_load()
    def idq_loads():
        a("global_load_dword v%d, v%d, %s" % (vEI, vEA, sp(sBT)))
        a("global_load_dwordx4 %s, v%d, %s" % (vr(vQ, 4), t3, sp(sQ)))
        for b in range(1, 4):
            a("global_load_dwordx4 %s, v%d, %s" % (vr(vQ + 4 * b, 4), vQo + b - 1, sp(sQ)))
        stamp(63)
    if qpos == 0:
        idq_loads()
    a("s_mov_b32 s%d, s%d" % (KS, sK))
    a("s_and_b32 s%d, s%d, 0xffff" % (KS + 1, sK + 1))
    a("s_mov_b32 s%d, 0x%x" % (KS + 2, CACHE_BYTES))
    a("s_mov_b32 s%d, 0x00020000" % (KS + 3))
    a("s_mov_b32 s%d, s%d" % (VS, sV))
    a("s_and_b32 s%d, s%d, 0xffff" % (VS + 1, sV + 1))
    a("s_mov_b32 s%d, 0x%x" % (VS + 2, CACHE_BYTES))
    a("s_mov_b32 s%d, 0x00020000" % (VS + 3))
    if lead or deep:
        a("s_sub_u32 s%d, 7, s%d" % (sLK, sHG))
        a("s_lshl_b32 s%d, s%d, 5" % (sLK, sLK))
        a("s_add_u32 s%d, s%d, s%d" % (sLK, sLK, sSPLIT))
    a("s_waitcnt lgkmcnt(0)")
    if lead:
        a("s_cmp_lt_u32 s%d, %d" % (sLK, lead))
        a("s_cbranch_scc0 L_nolead")
        a("s_add_u32 s3, s%d, 1280" % sDESC)
        a("s_cmp_lt_i32 s%d, 0" % sDESC)
        a("s_cselect_b32 s3, s3, s%d" % sDESC)
        a("s_min_u32 s3, s3, 1279")
        a("s_lshl_b32 s%d, s3, 17" % sOFF)
        issue((vW - vR) // 32)
        for k in range(D - 1):
            a("s_mov_b32 s%d, s%d" % (sDESC + k, sDESC + k + 1))
        a("s_mov_b32 s%d, s%d" % (sDESC + D - 1, sX2))
        a.label("L_nolead")
    def first_issue(k):
        a("s_add_u32 s3, s%d, 1280" % (sDESC + k))
        a("s_cmp_lt_i32 s%d, 0" % (sDESC + k))
        a("s_cselect_b32 s3, s3, s%d" % (sDESC + k))
        a("s_min_u32 s3, s3, 1279")
        a("s_lshl_b32 s%d, s3, 17" % sOFF)
        dummyC(k)
        issue(k, (16 + 8 * k) if stamps == 3 else None)
        stamp(60 + k)
    if deep:
        first_issue(0)
        a("s_cmp_lt_u32 s%d, %d" % (sLK, deep))
        a("s_cbranch_scc0 L_nodeep")
        first_issue(1)
        idq_loads()
        first_issue(2)
        a("s_branch L_deepjoin")
        a.label("L_nodeep")
        idq_loads()
        first_issue(1)
        a.label("L_deepjoin")
    else:
        for k in range(D):
            first_issue(k)
            if qpos == k + 1:
                idq_loads()
    stamp(3)
    for b in range(4):
        for k in range(8):
            a("v_mov_b32 v%d, 0" % (vO + 8 * b + k))
        a("v_mov_b32 v%d, 0xf149f2ca" % (vM + b))
        a("v_mov_b32 v%d, 0" % (vL + b))
    ctx_norm()
    vEC, vEN = vS + 14, vS + 15
    a("v_mov_b32 v%d, s%d" % (vEC, sCE))
    for b in range(1, 4):
        a("s_mov_b32 exec_lo, 0x%08x" % (0x11111111 << b))
        a("s_mov_b32 exec_hi, 0x%08x" % (0x11111111 << b))
        a("v_mov_b32 v%d, s%d" % (vEC, sCE + b))
    a("s_mov_b64 exec, -1")
    a("v_lshlrev_b32 v%d, 9, v%d" % (vT0, vEK))
    a("s_lshl_b32 s3, s%d, 4" % sSPLIT)
    a("v_add_u32 v%d, s3, v%d" % (vT0, vT0))
    a("v_sub_u32 v%d, v%d, v%d" % (vEN, vEC, vT0))
    a("v_med3_i32 v%d, v%d, 0, 16" % (vEN, vEN))
    a("v_lshlrev_b32 v%d, 3, v%d" % (vT1, vEB))
    a("v_lshlrev_b32 v%d, v%d, v%d" % (vEN, vT1, vEN))
    a("v_lshrrev_b32 v%d, 1, v%d" % (vT0, vT0))
    a("s_mov_b32 s%d, 0x1000" % sSS)
    a("s_mov_b32 s%d, 0x1000" % sU)
    a("s_mov_b32 s%d, -1" % sNC)
    if deep:
        a("s_cmp_lt_u32 s%d, %d" % (sLK, deep))
        a("s_cselect_b32 s%d, %d, %d" % (sNF, NL - 1, NL))
        a("s_cselect_b32 s%d, %d, %d" % (sDL, 2 * D + 1, 2 * D - 1))
        a("s_cselect_b32 s%d, %d, %d" % (sLD, D, D - 1))
        a("s_cselect_b32 s%d, %d, 0" % (sSTAGE, D))
    else:
        a("s_mov_b32 s%d, %d" % (sNF, NL))
    a("s_mov_b32 s%d, 0" % sDYN0)
    a("s_mov_b32 s%d, 0" % sEXH)
    a("s_mov_b32 s%d, -1" % sSTOPN)
    a("s_mov_b32 s%d, 0" % sFOK)
    a("s_mov_b32 s%d, 0" % sN)
    if not deep:
        a("s_mov_b32 s%d, 0" % sSTAGE)
    if tail3:
        cb = 3 if tail3 == 16 else 2
        tA, tB = vA, vA + 1
        a("v_lshlrev_b32 v%d, 4, v%d" % (vL16p, vLANE))
        a("s_lshl_b32 s3, s%d, 13" % sW)
        a("v_add_u32 v%d, s3, v%d" % (vLW0, vL16p))
        a("s_lshl_b32 s3, s%d, 11" % sW)
        a("v_add_u32 v%d, s3, v%d" % (vLR0, vL16p))
        a("v_lshrrev_b32 v%d, 4, v%d" % (tA, vLANE))
        a("v_lshlrev_b32 v%d, 3, v%d" % (tB, tA))
        a("s_lshl_b32 s3, s%d, 7" % sW)
        a("v_add_u32 v%d, s3, v%d" % (vLW1, tB))
        a("s_lshl_b32 s3, s%d, 5" % sW)
        a("v_add_u32 v%d, s3, v%d" % (vLR1, tB))
        a("s_lshl_b32 s3, s%d, 3" % sSPLIT)
        a("v_lshlrev_b32 v%d, 8, v%d" % (vSTM, tA))
        a("v_add_u32 v%d, s3, v%d" % (vSTM, vSTM))
        a("v_and_b32 v%d, 1, v%d" % (tB, tA))
        a("v_lshlrev_b32 v%d, 2, v%d" % (tB, tB))
        a("v_and_b32 v%d, 2, v%d" % (tA, tA))
        a("v_add_u32 v%d, v%d, v%d" % (tB, tB, tA))
        a("v_and_b32 v%d, %d, v%d" % (tA, (1 << cb) - 1, vLANE))
        a("v_lshl_add_u32 v%d, v%d, 4, v%d" % (tB, tA, tB))
        a("s_lshl_b32 s3, s%d, 13" % sW)
        a("s_lshl_b32 s4, s%d, 10" % sHG)
        a("s_add_u32 s3, s3, s4")
        a("v_add_u32 v%d, s3, v%d" % (vOAp, tB))
        a("v_lshrrev_b32 v%d, %d, v%d" % (tB, cb, vLANE))
        nrec = 32 >> (6 - cb)
        a("v_mul_u32_u24 v%d, %d, v%d" % (vCD, nrec * 2048, tB))
        a("v_lshl_add_u32 v%d, v%d, 4, v%d" % (vCD, tA, vCD))
        a("v_add_u32 v%d, 4096, v%d" % (vCD2, vCD))
        a("v_mul_u32_u24 v%d, %d, v%d" % (vCMa, nrec * 8, tB))
        a("s_lshl_b32 s3, s%d, 2" % sHG)
        a("s_add_u32 s3, s3, s%d" % sW)
        a("s_mul_i32 s3, s3, %d" % REGION)
        a("s_add_u32 s%d, s%d, s3" % (WSRD, sWS))
        a("s_addc_u32 s%d, s%d, 0" % (WSRD + 1, sWS + 1))
        a("s_and_b32 s%d, s%d, 0xffff" % (WSRD + 1, WSRD + 1))
        a("s_mov_b32 s%d, %d" % (WSRD + 2, REGION))
        a("s_mov_b32 s%d, 0x00020000" % (WSRD + 3))
        a("s_lshl_b32 s%d, s%d, 11" % (sRECO, sSPLIT))
        a("s_mov_b32 s%d, %d" % (sREGO, REG_O))
    a("s_waitcnt vmcnt(%d)" % (9 * (D - qpos)))
    stamp(2)
    full = "row_mask:0xf bank_mask:0xf"
    a("v_cmp_gt_i32 vcc, 0, v%d" % vEI)
    a("v_add_u32 v%d, 1280, v%d" % (vT1, vEI))
    a("v_cndmask_b32 v%d, v%d, v%d, vcc" % (vEI, vEI, vT1))
    a("v_min_u32 v%d, 1279, v%d" % (vEI, vEI))
    a("v_mov_b32_dpp v%d, v%d quad_perm:[0,0,0,0] %s" % (vT1, vEI, full))
    a("v_cmp_eq_u32 vcc, v%d, v%d" % (vEI, vT1))
    a("v_cndmask_b32 v%d, 0, v%d, vcc" % (vEP, vEN))
    a("v_lshlrev_b32 v%d, 17, v%d" % (vEI, vT1))
    a("v_cmp_ne_u32 vcc, 0, v%d" % vEP)
    a("s_and_b32 vcc_lo, vcc_lo, 0xeeeeeeee")
    a("s_and_b32 vcc_hi, vcc_hi, 0xeeeeeeee")
    a("v_mov_b32 v%d, %d" % (vT1, 4 << 5))
    a("v_cndmask_b32 v%d, 0, v%d, vcc" % (vT1, vT1))
    a("v_or_b32 v%d, v%d, v%d" % (vEP, vEP, vT1))
    a("v_or_b32_dpp v%d, v%d, v%d quad_perm:[1,0,3,2] %s" % (vEP, vEP, vEP, full))
    a("v_or_b32_dpp v%d, v%d, v%d quad_perm:[2,3,0,1] %s" % (vEP, vEP, vEP, full))
    a("s_min_u32 s3, s%d, 1" % sQZ)
    a("s_cmp_eq_u32 s3, 0")
    a("s_cbranch_scc1 L_qok")
    for b in range(4):
        lab = a.newlabel("qz")
        a("s_bitcmp0_b32 s%d, %d" % (sQZ, b))
        a("s_cbranch_scc1 %s" % lab)
        for k in range(4):
            a("v_mov_b32 v%d, 0" % (vQ + 4 * b + k))
        a.label(lab)
    a.label("L_qok")
    a("s_cmp_lt_u32 s%d, 4096" % sCE)
    a("s_cbranch_scc1 L_slowstart")
    a("s_mov_b32 exec_lo, 0x11111111")
    a("s_mov_b32 exec_hi, 0")
    a("ds_write_b64 v%d, %s offset:%d" % (vT0, vr(vEI, 2), L_LIST))
    a("s_mov_b64 exec, -1")
    for k in range(DM):
        a("v_readlane_b32 s%d, v%d, %d" % (sDESC + k, vEP, 4 * k))
    stamp(5)
    if lead:
        a("s_cmp_lt_u32 s%d, %d" % (sLK, lead))
        a("s_cbranch_scc0 L_loop")
        a("s_mov_b32 s%d, s%d" % (sCUR, sDESC))
        for k in range(D - 1):
            a("s_mov_b32 s%d, s%d" % (sDESC + k, sDESC + k + 1))
        a("v_readlane_b32 s%d, v%d, %d" % (sDESC + D - 1, vEP, 4 * D))
        a("s_branch L_comp")
    if stamps == 3:
        for j in range(8 * D):
            rem = 9 * D - 1 - (j // 8) * 9 - 1 - (j % 8) + (0)
            a("s_waitcnt vmcnt(%d)" % max(0, (8 * D - 1 - j) + (D - 1 - j // 8)))
            stamp(40 + j) if 40 + j < 60 else None
    if warm:
        pass

    def tail3_code():
        cb = 3 if tail3 == 16 else 2
        nrec = 32 >> (6 - cb)
        X = lambda b, i: vS + 4 * b + i
        for b in range(4):
            a("v_add_f32_dpp v%d, v%d, v%d row_ror:4 %s" % (vL + b, vL + b, vL + b, full))
        for b in range(4):
            a("ds_write_b128 v%d, %s offset:%d" % (vLW0, vr(vO + 8 * b, 4), L_OB + b * 2048))
            a("v_add_f32_dpp v%d, v%d, v%d row_ror:8 %s" % (X(b, 1), vL + b, vL + b, full))
            a("ds_write_b128 v%d, %s offset:%d" % (vLW0, vr(vO + 8 * b + 4, 4), L_OB + b * 2048 + 1024))
            a("v_mov_b32 v%d, v%d" % (X(b, 0), vM + b))
        a("s_mov_b32 exec_lo, 0x00010001")
        a("s_mov_b32 exec_hi, 0x00010001")
        for b in range(4):
            a("ds_write_b64 v%d, %s offset:%d" % (vLW1, vr(X(b, 0), 2), L_ML + b * 32))
        a("s_mov_b64 exec, -1")
        a("s_waitcnt lgkmcnt(0)")
        stamp(7)
        a("s_barrier")
        stamp(8)
        vML = vW + 2
        ORr = lambda i: vO + 8 * i
        vF, vLs, vOs = vS, vS + 1, vS + 4
        for w in range(4):
            a("ds_read_b64 %s, v%d offset:%d" % (vr(vML + 2 * w, 2), vLR1, L_ML + w * 128))
        for w in range(4):
            a("ds_read_b128 %s, v%d offset:%d" % (vr(ORr(w), 4), vLR0, L_OB + w * 8192))
            a("ds_read_b128 %s, v%d offset:%d" % (vr(ORr(w) + 4, 4), vLR0, L_OB + w * 8192 + 1024))
        a("s_waitcnt lgkmcnt(8)")
        Mr = lambda i: vML + 2 * i
        Lr = lambda i: vML + 2 * i + 1
        a("v_max3_f32 v%d, v%d, v%d, v%d" % (vF, Mr(0), Mr(1), Mr(2)))
        a("v_max_f32 v%d, v%d, v%d" % (vF, vF, Mr(3)))
        for i in range(4):
            a("v_sub_f32 v%d, v%d, v%d" % (Mr(i), Mr(i), vF))
        for i in range(4):
            a("v_exp_f32 v%d, v%d" % (Mr(i), Mr(i)))
        a("v_min_u32 v%d, -2, v%d" % (vF, vF))
        a("v_mul_f32 v%d, v%d, v%d" % (vLs, Lr(0), Mr(0)))
        for i in range(1, 4):
            a("v_fmac_f32 v%d, v%d, v%d" % (vLs, Lr(i), Mr(i)))
        for i in range(4):
            a("s_waitcnt lgkmcnt(%d)" % (6 - 2 * i))
            for k in range(4):
                o, r = vr(vOs + 2 * k, 2), vr(ORr(i) + 2 * k, 2)
                if i == 0:
                    a("v_pk_mul_f32 %s, %s, %s op_sel_hi:[1,0]" % (o, r, vr(Mr(i), 2)))
                else:
                    a("v_pk_fma_f32 %s, %s, %s, %s op_sel_hi:[1,0,1]" % (o, r, vr(Mr(i), 2), o))
            if i == 0:
                a("v_min_u32 v%d, -2, v%d" % (vLs, vLs))
                a("s_mov_b32 exec_lo, 0x00010001")
                a("s_mov_b32 exec_hi, 0x00010001")
                a("buffer_store_dwordx2 %s, v%d, s[%d:%d], s%d offen sc1" % (vr(vF, 2), vSTM, WSRD, WSRD + 3, sREGO))
                a("s_mov_b64 exec, -1")
        for k in range(4):
            a("v_min_u32 v%d, -2, v%d" % (vOs + k, vOs + k))
        a("buffer_store_dwordx4 %s, v%d, s[%d:%d], s%d offen sc1" % (vr(vOs, 4), vL16p, WSRD, WSRD + 3, sRECO))
        for k in range(4, 8):
            a("v_min_u32 v%d, -2, v%d" % (vOs + k, vOs + k))
        a("buffer_store_dwordx4 %s, v%d, s[%d:%d], s%d offen offset:1024 sc1" % (vr(vOs + 4, 4), vL16p, WSRD, WSRD + 3, sRECO))
        stamp(9)
        sHX, sIT = 52, 53
        a("s_waitcnt vmcnt(3)")
        a("v_readfirstlane_b32 s3, v%d" % vINI)
        a("v_readfirstlane_b32 s6, v%d" % vPK)
        stamp(10)
        a("s_cmp_lt_u32 s3, %d" % (32 - ncomb))
        a("s_cbranch_scc1 L_exit")
        a("s_sub_u32 s%d, s3, %d" % (sHX, 32 - ncomb))
        a("s_and_b32 s%d, s%d, %d" % (sHX, sHX, ncomb - 1))
        a("s_lshr_b32 s7, s%d, %d" % (sHX, cb))
        a("s_and_b32 s3, s%d, %d" % (sHX, (1 << cb) - 1))
        a("s_lshl_b32 s3, s3, %d" % (7 if cb == 3 else 6))
        a("s_lshl_b32 s4, s7, 10")
        a("s_add_u32 s4, s4, s3")
        a("s_lshr_b32 s5, s3, 8")
        a("s_lshl_b32 s5, s5, 8")
        a("s_add_u32 s5, s5, %d" % REG_O)
        a("s_lshl_b32 s7, s7, 3")
        a("s_add_u32 s7, s7, s3")
        a("s_mov_b32 s%d, 0" % sIT)
        a("s_cmp_eq_u32 s6, 32")
        a("s_cbranch_scc1 L_comb")
        a.label("L_spinC")
        a("global_load_dword v%d, v%d, %s offset:4 sc1" % (vPK, vLA, sp(sDBG)))
        a("s_waitcnt vmcnt(0)")
        a("v_readfirstlane_b32 s6, v%d" % vPK)
        a("s_cmp_lt_u32 s6, 32")
        a("s_cbranch_scc1 L_spinC")
        nld = nrec + nrec // 2
        def regs(sv):
            base = vW + 24 * sv if sv < 2 else vO + 24 * (sv - 2)
            ML = base
            O = lambda i: base + 8 + 4 * i
            return ML, O
        def loads(sv):
            ML, O = regs(sv)
            for t in range(nrec // 2):
                a("buffer_load_dwordx4 %s, v%d, s[%d:%d], s5 offen offset:%d sc1" % (vr(ML + 4 * t, 4), vCMa, WSRD, WSRD + 3, 16 * t))
            for i in range(nrec):
                a("buffer_load_dwordx4 %s, v%d, s[%d:%d], s4 offen offset:%d sc1" % (vr(O(i), 4), vCD if i < 2 else vCD2, WSRD, WSRD + 3, 2048 * (i & 1)))
        cT = [vS + i for i in range(8)]
        def check(sv):
            ML, O = regs(sv)
            rs = [ML + i for i in range(2 * nrec)] + [O(i) + k for i in range(nrec) for k in range(4)]
            lvl = rs
            while len(lvl) > 1:
                nxt = []
                i = 0
                t = 0
                while i < len(lvl):
                    if len(lvl) - i >= 3:
                        a("v_max3_u32 v%d, v%d, v%d, v%d" % (cT[t], lvl[i], lvl[i + 1], lvl[i + 2])); nxt.append(cT[t]); t += 1; i += 3
                    elif len(lvl) - i == 2:
                        a("v_max_u32 v%d, v%d, v%d" % (cT[t], lvl[i], lvl[i + 1])); nxt.append(cT[t]); t += 1; i += 2
                    else:
                        nxt.append(lvl[i]); i += 1
                lvl = nxt
            a("v_cmp_eq_u32 vcc, -1, v%d" % lvl[0])
        def allred(r, t, op):
            if cb == 2:
                a("%s_dpp v%d, v%d, v%d row_ror:4 %s" % (op, r, r, r, full))
            a("%s_dpp v%d, v%d, v%d row_ror:8 %s" % (op, r, r, r, full))
            a("v_mov_b32 v%d, v%d" % (t, r))
            a("v_permlane16_swap_b32 v%d, v%d" % (r, t))
            a("%s v%d, v%d, v%d" % (op, r, r, t))
            a("v_mov_b32 v%d, v%d" % (t, r))
            a("v_permlane32_swap_b32 v%d, v%d" % (r, t))
            a("%s v%d, v%d, v%d" % (op, r, r, t))
        def use(sv):
            ML, O = regs(sv)
            cM, cT0, cL, cT1 = vS + 8, vS + 9, vS + 10, vS + 11
            cW = lambda i: vA + 2 * i
            cAcc = vS + 12
            if nrec == 4:
                a("v_max3_f32 v%d, v%d, v%d, v%d" % (cM, ML, ML + 2, ML + 4))
                a("v_max_f32 v%d, v%d, v%d" % (cM, cM, ML + 6))
            else:
                a("v_max_f32 v%d, v%d, v%d" % (cM, ML, ML + 2))
            allred(cM, cT0, "v_max_f32")
            for i in range(nrec):
                a("v_sub_f32 v%d, v%d, v%d" % (cW(i), ML + 2 * i, cM))
            for i in range(nrec):
                a("v_exp_f32 v%d, v%d" % (cW(i), cW(i)))
            a("v_mul_f32 v%d, v%d, v%d" % (cL, ML + 1, cW(0)))
            for i in range(1, nrec):
                a("v_fmac_f32 v%d, v%d, v%d" % (cL, ML + 2 * i + 1, cW(i)))
            for i in range(nrec):
                for k in range(2):
                    o, r = vr(cAcc + 2 * k, 2), vr(O(i) + 2 * k, 2)
                    if i == 0:
                        a("v_pk_mul_f32 %s, %s, %s op_sel_hi:[1,0]" % (o, r, vr(cW(i), 2)))
                    else:
                        a("v_pk_fma_f32 %s, %s, %s, %s op_sel_hi:[1,0,1]" % (o, r, vr(cW(i), 2), o))
            a("v_permlane32_swap_b32 v%d, v%d" % (cAcc, cAcc + 1))
            a("v_permlane32_swap_b32 v%d, v%d" % (cAcc + 2, cAcc + 3))
            if cb == 2:
                a("v_add_f32_dpp v%d, v%d, v%d row_ror:4 %s" % (cL, cL, cL, full))
            a("v_add_f32 v%d, v%d, v%d" % (cAcc, cAcc, cAcc + 1))
            a("v_add_f32 v%d, v%d, v%d" % (cAcc + 2, cAcc + 2, cAcc + 3))
            a("v_add_f32_dpp v%d, v%d, v%d row_ror:8 %s" % (cL, cL, cL, full))
            a("v_mov_b32 v%d, v%d" % (cT1, cL))
            a("v_permlane16_swap_b32 v%d, v%d" % (cAcc, cAcc + 2))
            a("v_permlane16_swap_b32 v%d, v%d" % (cL, cT1))
            a("v_add_f32 v%d, v%d, v%d" % (cAcc, cAcc, cAcc + 2))
            a("v_add_f32 v%d, v%d, v%d" % (cL, cL, cT1))
            a("v_mov_b32 v%d, v%d" % (cT1, cL))
            if cb == 2:
                a("v_add_f32_dpp v%d, v%d, v%d row_ror:4 %s" % (cAcc, cAcc, cAcc, full))
            a("v_permlane32_swap_b32 v%d, v%d" % (cL, cT1))
            a("v_add_f32_dpp v%d, v%d, v%d row_ror:8 %s" % (cAcc, cAcc, cAcc, full))
            a("v_add_f32 v%d, v%d, v%d" % (cL, cL, cT1))
            a("v_rcp_f32 v%d, v%d" % (cL, cL))
            a("v_add_u32 v%d, s7, v%d" % (cT0, vOAp))
            a("v_mul_f32 v%d, v%d, v%d" % (cAcc, cAcc, cL))
            a("v_cvt_pk_bf16_f32 v%d, v%d, v%d" % (cAcc, cAcc, cAcc))
            m = 0x00ff00ff if cb == 3 else 0x000f000f
            a("s_mov_b32 exec_lo, 0x%08x" % m)
            a("s_mov_b32 exec_hi, 0x%08x" % m)
            a("global_store_short v%d, v%d, %s" % (cT0, cAcc, sp(sOUT)))
            a("s_mov_b64 exec, -1")
        a.label("L_comb")
        if psets == 1:
            a.label("L_poll")
            loads(0)
            a("s_mov_b64 exec, -1")
            a("s_waitcnt vmcnt(0)")
            if stamps == 4:
                a("s_min_u32 s3, s%d, 40" % sIT)
                a("s_add_u32 m0, s3, 16")
                stamp("m0")
            check(0)
            a("s_cbranch_vccz L_comb_use")
            a("s_add_u32 s%d, s%d, 1" % (sIT, sIT))
            a("s_cmp_gt_u32 s%d, 0x400000" % sIT)
            a("s_cbranch_scc1 L_comb_use")
            if pslp:
                a("s_sleep %d" % pslp)
            a("s_mov_b64 exec, vcc")
            a("s_branch L_poll")
            a.label("L_comb_use")
            use(0)
        else:
            assert psets <= 3
            for sv in range(psets):
                loads(sv)
                if sv + 1 < psets and pslp:
                    a("s_sleep %d" % pslp)
            a.label("L_poll")
            for sv in range(psets):
                a("s_waitcnt vmcnt(%d)" % (nld * (psets - 1)))
                check(sv)
                a("s_cbranch_vccz L_use%d" % sv)
                a("s_mov_b64 exec, vcc")
                loads(sv)
                a("s_mov_b64 exec, -1")
            a("s_add_u32 s%d, s%d, 1" % (sIT, sIT))
            a("s_cmp_le_u32 s%d, 0x400000" % sIT)
            a("s_cbranch_scc1 L_poll")
            for sv in range(psets):
                a.label("L_use%d" % sv)
                use(sv)
                a("s_waitcnt vmcnt(0)")
                if sv + 1 < psets:
                    a("s_branch L_exit")

    a.label("L_loop")
    for k in range(1, D):
        a("s_cmp_eq_u32 s%d, %d" % (sSTAGE, k))
        a("s_cbranch_scc1 L_st%d" % k)
    if deep:
        a("s_cmp_ge_u32 s%d, %d" % (sSTAGE, D))
        a("s_cbranch_scc1 L_deepdisp")
    def stage_body(k, D, sid0, fall):
        LEAD = D - 1
        WAITN = 8 * (D - 1) + (D - 2)
        tg = sid0 + k
        kc = (k + D - LEAD) % D
        a.label("L_st%d" % tg)
        a("s_cmp_eq_u32 s%d, 0" % (sDESC + k))
        a("s_cbranch_scc1 L_done")
        a("s_add_u32 s3, s%d, %d" % (sN, D))
        a("s_lshl_b32 s%d, s3, 5" % sP)
        a("s_add_u32 s%d, s%d, s%d" % (sP, sP, sSPLIT))
        a("s_waitcnt vmcnt(%d)" % WAITN)
        if stamps == 2:
            a("s_min_u32 s4, s%d, 43" % sN)
            a("s_add_u32 m0, s4, 16")
            stamp("m0")
        a("v_readfirstlane_b32 s%d, v%d" % (sCL, vCLM + kc))
        a("s_add_u32 s4, s%d, s%d" % (sCL, sDYN0))
        a("s_cmp_lt_u32 s3, s%d" % sSS)
        a("s_cselect_b32 s%d, s%d, s4" % (sP, sP))
        a("s_cmp_ge_u32 s%d, s%d" % (sN, sSTOPN))
        a("s_cselect_b32 s%d, -1, s%d" % (sP, sP))
        a("s_cmp_lt_u32 s%d, s%d" % (sP, sU))
        a("s_cselect_b32 s4, s%d, 0" % sP)
        a("s_cselect_b32 s%d, s%d, 1" % (sEXH, sEXH))
        a("s_cselect_b32 s%d, 0x%x, 0" % (KS + 2, CACHE_BYTES))
        a("s_add_u32 s5, s%d, %d" % (sN, LEAD))
        a("s_cmp_lg_u32 s%d, 0" % sEXH)
        a("s_cselect_b32 s5, s5, -1")
        a("s_min_u32 s%d, s%d, s5" % (sSTOPN, sSTOPN))
        a("s_mov_b32 s%d, s%d" % (VS + 2, KS + 2))
        a("s_lshl_b32 s4, s4, 3")
        a("v_mov_b32 v%d, s4" % vT0)
        a("ds_read_b64 %s, v%d offset:%d" % (vr(vT0, 2), vT0, L_LIST))
        for i in range(16):
            a("v_mov_b64 %s, %s" % (vr(vW + 2 * i, 2), vr(vR + 32 * k + 2 * i, 2)))
        ldum, lgo, lcl, lno = "L_dum%d" % tg, "L_iss%d" % tg, "L_cl%d" % tg, "L_nocl%d" % tg
        a("s_cmp_ge_u32 s%d, s%d" % (sN, sNC))
        a("s_cbranch_scc0 %s" % lno)
        a("s_cmp_lg_u32 s%d, 0" % sEXH)
        a("s_cbranch_scc1 %s" % ldum)
        a("s_cmp_lg_u32 s%d, 0" % sFOK)
        a("s_cbranch_scc1 %s" % lcl)
        a("s_lshr_b32 s4, s%d, 16" % sCL)
        a("s_cmp_lg_u32 s4, 0")
        a("s_cbranch_scc0 L_elect")
        a("s_mov_b32 s%d, 1" % sFOK)
        a.label(lcl)
        a("s_mov_b64 exec, 1")
        a("global_atomic_add v%d, v%d, v%d, %s sc0" % (vCLM + k, vCA, vONE, sp(sWS)))
        a("s_mov_b64 exec, -1")
        a("s_branch %s" % lgo)
        a.label(lno)
        a("s_cmp_eq_u32 s%d, s%d" % (sN, sNF))
        a("s_cbranch_scc0 %s" % ldum)
        a("s_cmp_eq_u32 s%d, 0x1000" % sU)
        a("s_cbranch_scc1 L_getconst")
        a("s_mov_b64 exec, 1")
        a("global_load_dword v%d, v%d, %s sc1" % (vCLM + k, vLA, sp(sDBG)))
        a("s_mov_b64 exec, -1")
        a("s_branch %s" % lgo)
        a.label(ldum)
        dummyC(k)
        a.label(lgo)
        a("s_waitcnt lgkmcnt(0)")
        a("v_readfirstlane_b32 s%d, v%d" % (sOFF, vT0))
        a("v_readfirstlane_b32 s%d, v%d" % (sNEW, vT1))
        a("s_cmp_lg_u32 s%d, 0" % (KS + 2))
        a("s_cselect_b32 s%d, s%d, 0" % (sNEW, sNEW))
        a("s_cselect_b32 s%d, s%d, 0" % (sOFF, sOFF))
        issue(k)
        a("s_mov_b32 s%d, s%d" % (sCUR, sDESC + k))
        a("s_mov_b32 s%d, s%d" % (sDESC + k, sNEW))
        a("s_mov_b32 s%d, %d" % (sSTAGE, sid0 + (k + 1) % D))
        if not fall:
            a("s_branch L_comp")
    for k in range(D):
        stage_body(k, D, 0, k == D - 1)
    a.label("L_comp")
    if stamps == 1:
        a("s_min_u32 s3, s%d, 47" % sN)
        a("s_add_u32 m0, s3, 16")
        stamp("m0")
    a("s_bfe_u32 s%d, s%d, 0x30005" % (sTYPE, sCUR))
    for b in range(4):
        a("s_bfe_u32 s%d, s%d, 0x%x" % (sNV + b, sCUR, (5 << 16) | (8 * b)))
    a("s_cmp_eq_u32 s%d, 4" % sTYPE)
    a("s_cbranch_scc1 L_c4")
    for b in range(1, 4):
        a("s_cmp_eq_u32 s%d, %d" % (sTYPE, b))
        a("s_cbranch_scc1 L_c%d" % b)

    K = lambda i, k: vW + 4 * i + k
    V = lambda i, k: vW + 16 + 4 * i + k

    def compute(qs):
        nq = len(qs)
        S = lambda j, i: vS + 4 * j + i
        A = lambda j: vA + 2 * j
        P = lambda j: vA + 2 * j + 1
        PB = lambda j: vPB + 2 * j
        T = lambda j: vPB + 2 * j + 1
        msk = lambda j: sp(52 + 2 * j)
        for j, b in enumerate(qs):
            a("v_cmp_gt_u32 %s, s%d, v%d" % (msk(j), sNV + b, vTOK))
        for k in range(4):
            for j, b in enumerate(qs):
                for i in range(4):
                    if k == 0:
                        a("v_dot2_f32_bf16 v%d, v%d, v%d, 0" % (S(j, i), K(i, k), vQ + 4 * b + k))
                    else:
                        a("v_dot2c_f32_bf16 v%d, v%d, v%d" % (S(j, i), K(i, k), vQ + 4 * b + k))

        def unpack(i, dst):
            for k in range(4):
                a("v_lshlrev_b32 v%d, 16, v%d" % (dst + 2 * k, V(i, k)))
                a("v_and_b32 v%d, s%d, v%d" % (dst + 2 * k + 1, sHI, V(i, k)))
        unpack(0, vU)
        for j in range(nq):
            a("v_add_f32_dpp v%d, v%d, v%d row_ror:8 row_mask:0xf bank_mask:0x3" % (S(j, 0), S(j, 0), S(j, 0)))
            a("v_add_f32_dpp v%d, v%d, v%d row_ror:8 row_mask:0xf bank_mask:0x3" % (S(j, 1), S(j, 1), S(j, 1)))
            a("v_add_f32_dpp v%d, v%d, v%d row_ror:8 row_mask:0xf bank_mask:0xc" % (S(j, 0), S(j, 2), S(j, 2)))
            a("v_add_f32_dpp v%d, v%d, v%d row_ror:8 row_mask:0xf bank_mask:0xc" % (S(j, 1), S(j, 3), S(j, 3)))
        unpack(1, vU + 8)
        for j in range(nq):
            a("v_add_f32_dpp v%d, v%d, v%d row_half_mirror row_mask:0xf bank_mask:0x5" % (S(j, 0), S(j, 0), S(j, 0)))
        for j in range(nq):
            a("v_add_f32_dpp v%d, v%d, v%d row_half_mirror row_mask:0xf bank_mask:0xa" % (S(j, 0), S(j, 1), S(j, 1)))
        for j in range(nq):
            a("v_add_f32_dpp v%d, v%d, v%d quad_perm:[1,0,3,2] %s" % (S(j, 0), S(j, 0), S(j, 0), full))
        for j in range(nq):
            a("v_add_f32_dpp v%d, v%d, v%d quad_perm:[2,3,0,1] %s" % (S(j, 0), S(j, 0), S(j, 0), full))
        for j in range(nq):
            a("v_mul_f32 v%d, s%d, v%d" % (S(j, 0), sC, S(j, 0)))
        for j in range(nq):
            a("v_cndmask_b32 v%d, v%d, v%d, %s" % (S(j, 0), vNEG, S(j, 0), msk(j)))
        for j, b in enumerate(qs):
            a("v_max_f32 v%d, v%d, v%d" % (T(j), S(j, 0), vM + b))
        for j in range(nq):
            a("v_max_f32_dpp v%d, v%d, v%d row_ror:4 %s" % (T(j), T(j), T(j), full))
        for j in range(nq):
            a("v_max_f32_dpp v%d, v%d, v%d row_ror:8 %s" % (T(j), T(j), T(j), full))
        for j, b in enumerate(qs):
            a("v_sub_f32 v%d, v%d, v%d" % (A(j), vM + b, T(j)))
            a("v_sub_f32 v%d, v%d, v%d" % (P(j), S(j, 0), T(j)))
        for j, b in enumerate(qs):
            a("v_exp_f32 v%d, v%d" % (A(j), A(j)))
            a("v_exp_f32 v%d, v%d" % (P(j), P(j)))
        for j, b in enumerate(qs):
            a("v_mov_b32 v%d, v%d" % (vM + b, T(j)))
        for j, b in enumerate(qs):
            a("v_fma_f32 v%d, v%d, v%d, v%d" % (vL + b, vL + b, A(j), P(j)))
        for j, b in enumerate(qs):
            for k in range(4):
                o = vO + 8 * b + 2 * k
                a("v_pk_mul_f32 %s, %s, %s op_sel_hi:[1,0]" % (vr(o, 2), vr(o, 2), vr(A(j), 2)))
        for i in range(4):
            u = vU + 8 * (i & 1)
            for j in range(nq):
                a("v_mov_b32_dpp v%d, v%d row_newbcast:%d %s" % (PB(j), P(j), 4 * i, full))
            for j, b in enumerate(qs):
                for k in range(4):
                    o = vO + 8 * b + 2 * k
                    a("v_pk_fma_f32 %s, %s, %s, %s op_sel_hi:[1,0,1]" % (vr(o, 2), vr(u + 2 * k, 2), vr(PB(j), 2), vr(o, 2)))
            if i + 2 < 4:
                unpack(i + 2, u)

    for b in range(4):
        a.label("L_c%d" % b)
        compute([b])
        a("s_branch L_next")
    a.label("L_c4")
    compute([0, 1, 2, 3])
    a.label("L_next")
    a("s_add_u32 s%d, s%d, 1" % (sN, sN))
    a("s_branch L_loop")

    a.label("L_done")
    stamp(6)
    a("s_cmp_lg_u32 s%d, 0" % sFOK)
    a("s_cbranch_scc0 L_elect")
    if warm:
        a.raw("    ; WARM_BEGIN")
    a("s_mov_b64 exec, 1")
    a("global_atomic_add v%d, v%d, v%d, %s offset:1024 sc0" % (vINI, vCA, vONE, sp(sWS)))
    if tail2:
        a("global_load_dword v%d, v%d, %s offset:4 sc1" % (vPK, vLA, sp(sDBG)))
    if tail3 and tlbw:
        a("buffer_load_dword v%d, v%d, s[%d:%d], s%d offen sc1" % (vA, vL16p, WSRD, WSRD + 3, sRECO))
        a("global_load_dword v%d, v%d, %s" % (vA + 1, vOAp, sp(sOUT)))
    a("s_mov_b64 exec, -1")
    if not tail3:
        X = lambda b, i: vS + 4 * b + i
        for b in range(4):
            a("v_add_f32_dpp v%d, v%d, v%d row_ror:4 %s" % (vL + b, vL + b, vL + b, full))
        a("v_lshlrev_b32 v%d, 4, v%d" % (vW, vLANE))
        a("s_lshl_b32 s3, s%d, 13" % sW)
        a("v_add_u32 v%d, s3, v%d" % (vT0, vW))
        for b in range(4):
            a("v_add_f32_dpp v%d, v%d, v%d row_ror:8 %s" % (X(b, 1), vL + b, vL + b, full))
        for b in range(4):
            a("ds_write_b128 v%d, %s offset:%d" % (vT0, vr(vO + 8 * b, 4), L_OB + b * 2048))
            a("ds_write_b128 v%d, %s offset:%d" % (vT0, vr(vO + 8 * b + 4, 4), L_OB + b * 2048 + 1024))
        for b in range(4):
            a("v_mov_b32 v%d, v%d" % (X(b, 0), vM + b))
        a("v_lshrrev_b32 v%d, 4, v%d" % (vW + 1, vLANE))
        a("v_lshlrev_b32 v%d, 3, v%d" % (vW + 1, vW + 1))
        a("s_lshl_b32 s3, s%d, 7" % sW)
        a("v_add_u32 v%d, s3, v%d" % (vT1, vW + 1))
        a("s_mov_b32 exec_lo, 0x00010001")
        a("s_mov_b32 exec_hi, 0x00010001")
        for b in range(4):
            a("ds_write_b64 v%d, %s offset:%d" % (vT1, vr(X(b, 0), 2), L_ML + b * 32))
        a("s_mov_b64 exec, -1")
        a("s_waitcnt lgkmcnt(0)")
        stamp(7)
        a("s_barrier")
        stamp(8)

        vA16, vR8 = vW, vW + 1
        vML = vW + 2
        ORr = lambda i: vO + 8 * i
        vF, vLs, vOs = vS, vS + 1, vS + 4
        a("s_lshl_b32 s3, s%d, 11" % sW)
        a("v_add_u32 v%d, s3, v%d" % (vT0, vA16))
        a("s_lshl_b32 s3, s%d, 5" % sW)
        a("v_add_u32 v%d, s3, v%d" % (vT1, vR8))
        for w in range(4):
            a("ds_read_b64 %s, v%d offset:%d" % (vr(vML + 2 * w, 2), vT1, L_ML + w * 128))
        for w in range(4):
            a("ds_read_b128 %s, v%d offset:%d" % (vr(ORr(w), 4), vT0, L_OB + w * 8192))
            a("ds_read_b128 %s, v%d offset:%d" % (vr(ORr(w) + 4, 4), vT0, L_OB + w * 8192 + 1024))
        a("s_lshl_b32 s3, s%d, 2" % sHG)
        a("s_add_u32 s3, s3, s%d" % sW)
        a("s_mul_i32 s3, s3, %d" % REGION)
        a("s_add_u32 s%d, s%d, s3" % (WSRD, sWS))
        a("s_addc_u32 s%d, s%d, 0" % (WSRD + 1, sWS + 1))
        a("s_and_b32 s%d, s%d, 0xffff" % (WSRD + 1, WSRD + 1))
        a("s_mov_b32 s%d, %d" % (WSRD + 2, REGION))
        a("s_mov_b32 s%d, 0x00020000" % (WSRD + 3))
        a("s_lshl_b32 s%d, s%d, 11" % (sOFF, sSPLIT))
        a("v_lshlrev_b32 v%d, 5, v%d" % (vA, vR8))
        a("s_lshl_b32 s3, s%d, 3" % sSPLIT)
        a("v_add_u32 v%d, s3, v%d" % (vA, vA))
        a("s_mov_b32 s4, %d" % REG_O)
        a("s_waitcnt lgkmcnt(8)")
        Mr = lambda i: vML + 2 * i
        Lr = lambda i: vML + 2 * i + 1
        a("v_max3_f32 v%d, v%d, v%d, v%d" % (vF, Mr(0), Mr(1), Mr(2)))
        a("v_max_f32 v%d, v%d, v%d" % (vF, vF, Mr(3)))
        for i in range(4):
            a("v_sub_f32 v%d, v%d, v%d" % (Mr(i), Mr(i), vF))
        for i in range(4):
            a("v_exp_f32 v%d, v%d" % (Mr(i), Mr(i)))
        a("v_mul_f32 v%d, v%d, v%d" % (vLs, Lr(0), Mr(0)))
        for i in range(1, 4):
            a("v_fmac_f32 v%d, v%d, v%d" % (vLs, Lr(i), Mr(i)))
        a("v_min_u32 v%d, -2, v%d" % (vF, vF))
        a("v_min_u32 v%d, -2, v%d" % (vLs, vLs))
        a("s_mov_b32 exec_lo, 0x00010001")
        a("s_mov_b32 exec_hi, 0x00010001")
        a("buffer_store_dwordx2 %s, v%d, s[%d:%d], s4 offen sc1" % (vr(vF, 2), vA, WSRD, WSRD + 3))
        a("s_mov_b64 exec, -1")
        a("s_waitcnt lgkmcnt(0)")
        for k in range(8):
            a("v_mul_f32 v%d, v%d, v%d" % (vOs + k, ORr(0) + k, Mr(0)))
        for i in range(1, 4):
            for k in range(8):
                a("v_fmac_f32 v%d, v%d, v%d" % (vOs + k, ORr(i) + k, Mr(i)))
        for k in range(8):
            a("v_min_u32 v%d, -2, v%d" % (vOs + k, vOs + k))
        a("buffer_store_dwordx4 %s, v%d, s[%d:%d], s%d offen sc1" % (vr(vOs, 4), vA16, WSRD, WSRD + 3, sOFF))
        a("buffer_store_dwordx4 %s, v%d, s[%d:%d], s%d offen offset:1024 sc1" % (vr(vOs + 4, 4), vA16, WSRD, WSRD + 3, sOFF))
        stamp(9)
        vAR, sAR, aoff = vCA, sWS, 1024
        vCA0, vCM = vA, vA + 1
        a("v_lshrrev_b32 v%d, 4, v%d" % (vCA0, vLANE))
        a("v_lshlrev_b32 v%d, 10, v%d" % (vCA0, vCA0))
        a("v_and_b32 v%d, 15, v%d" % (vCM, vLANE))
        a("v_lshl_add_u32 v%d, v%d, 4, v%d" % (vCA0, vCM, vCA0))
        a("v_lshrrev_b32 v%d, 5, v%d" % (vA + 2, vLANE))
        a("v_lshl_add_u32 v%d, v%d, 1, v%d" % (vCM, vCM, vA + 2))
        a("v_lshlrev_b32 v%d, 3, v%d" % (vCM, vCM))
        sHX = 52
        sIT = 53
        a("s_waitcnt vmcnt(3)")
        a("v_readfirstlane_b32 s3, v%d" % vINI)
        stamp(10)
        a("s_cmp_lt_u32 s3, %d" % (32 - ncomb))
        a("s_cbranch_scc1 L_exit")
        a("s_sub_u32 s%d, s3, %d" % (sHX, 32 - ncomb))
        a("s_mov_b32 s%d, 0" % sIT)
        if tail2:
            a("v_readfirstlane_b32 s3, v%d" % vPK)
            a("s_cmp_eq_u32 s3, 32")
            a("s_cbranch_scc1 L_comb")
            a.label("L_spinC")
            a("global_load_dword v%d, v%d, %s offset:4 sc1" % (vPK, vLA, sp(sDBG)))
            a("s_waitcnt vmcnt(0)")
            a("v_readfirstlane_b32 s3, v%d" % vPK)
            a("s_cmp_lt_u32 s3, 32")
            a("s_cbranch_scc1 L_spinC")
        else:
            a("s_cmp_eq_u32 s3, 31")
            a("s_cbranch_scc1 L_comb")
            a.label("L_spinC")
            a("global_load_dword v%d, v%d, %s offset:%d sc1" % (vPK, vAR, sp(sAR), aoff))
            a("s_waitcnt vmcnt(0)")
            a("v_readfirstlane_b32 s3, v%d" % vPK)
            a("s_cmp_lt_u32 s3, 32")
            a("s_cbranch_scc1 L_spinC")
        a.label("L_comb")
        assert ncomb == 4
        cML = vS
        cO = lambda i: vW + 4 * i if i < 12 else vO + 4 * (i - 12)
        a("s_lshl_b32 s4, s%d, 8" % sHX)
        a("s_add_u32 s5, s4, %d" % REG_O)
        a("buffer_load_dwordx2 %s, v%d, s[%d:%d], s5 offen sc1" % (vr(cML, 2), vCM, WSRD, WSRD + 3))
        for i in range(16):
            a("buffer_load_dwordx4 %s, v%d, s[%d:%d], s4 offen sc1" % (vr(cO(i), 4), vCA0, WSRD, WSRD + 3))
            if i < 15:
                a("s_add_u32 s4, s4, 4096")
        a.label("L_comb_use")
        a("s_lshl_b32 s3, s%d, 2" % sHG)
        a("s_add_u32 s3, s3, s%d" % sHX)
        a("s_lshl_b32 s3, s3, 8")
        a("s_lshl_b32 s4, s%d, 13" % sW)
        a("s_add_u32 s3, s3, s4")
        vOA = vA + 3
        a("v_and_b32 v%d, 15, v%d" % (vOA, vLANE))
        a("v_lshlrev_b32 v%d, 4, v%d" % (vOA, vOA))
        a("v_bfe_u32 v%d, v%d, 4, 1" % (vA + 4, vLANE))
        a("v_lshl_add_u32 v%d, v%d, 3, v%d" % (vOA, vA + 4, vOA))
        a("v_add_u32 v%d, s3, v%d" % (vOA, vOA))
        cM, cW, cL, cT = vS + 2, vS + 3, vS + 4, vS + 5
        cAcc = vS + 8
        cPB = vPB
        cV = vS + 6
        a("s_waitcnt vmcnt(16)")
        a("v_max_u32 v%d, v%d, v%d" % (cV, cML, cML + 1))
        a("v_max_f32_dpp v%d, v%d, v%d row_ror:1 %s" % (cM, cML, cML, full))
        for r in (2, 4, 8):
            a("v_max_f32_dpp v%d, v%d, v%d row_ror:%d %s" % (cM, cM, cM, r, full))
        a("v_mov_b32 v%d, v%d" % (cT, cM))
        a("v_permlane32_swap_b32 v%d, v%d" % (cM, cT))
        a("v_max_f32 v%d, v%d, v%d" % (cM, cM, cT))
        a("v_sub_f32 v%d, v%d, v%d" % (cW, cML, cM))
        a("v_exp_f32 v%d, v%d" % (cW, cW))
        a("v_mul_f32 v%d, v%d, v%d" % (cL, cML + 1, cW))
        for r in (1, 2, 4, 8):
            a("v_add_f32_dpp v%d, v%d, v%d row_ror:%d %s" % (cL, cL, cL, r, full))
        a("v_mov_b32 v%d, v%d" % (cT, cL))
        a("v_permlane32_swap_b32 v%d, v%d" % (cL, cT))
        a("v_add_f32 v%d, v%d, v%d" % (cL, cL, cT))
        a("v_rcp_f32 v%d, v%d" % (cL, cL))
        for i in range(16):
            pb = cPB + 2 * (i & 1)
            a("v_mov_b32_dpp v%d, v%d row_newbcast:%d %s" % (pb, cW, i, full))
            a("s_waitcnt vmcnt(%d)" % (15 - i))
            a("v_max3_u32 v%d, v%d, v%d, v%d" % (cV, cV, cO(i), cO(i) + 1))
            a("v_max3_u32 v%d, v%d, v%d, v%d" % (cV, cV, cO(i) + 2, cO(i) + 3))
            for k in range(2):
                if i == 0:
                    a("v_pk_mul_f32 %s, %s, %s op_sel_hi:[1,0]" % (vr(cAcc + 2 * k, 2), vr(cO(i) + 2 * k, 2), vr(pb, 2)))
                else:
                    a("v_pk_fma_f32 %s, %s, %s, %s op_sel_hi:[1,0,1]" % (vr(cAcc + 2 * k, 2), vr(cO(i) + 2 * k, 2), vr(pb, 2), vr(cAcc + 2 * k, 2)))
        a("v_cmp_eq_u32 vcc, -1, v%d" % cV)
        if tail2 >= 2:
            a("s_cbranch_vccnz L_sel")
        else:
            a("s_add_u32 s%d, s%d, 1" % (sIT, sIT))
            a("s_cmp_gt_u32 s%d, 0x100000" % sIT)
            a("s_cbranch_scc1 L_combfin")
            a("s_cbranch_vccnz L_comb")
        a.label("L_combfin")
        for k in range(4):
            a("v_mov_b32 v%d, v%d" % (vS + 12 + k, cAcc + k))
        for k in range(4):
            a("v_permlane32_swap_b32 v%d, v%d" % (cAcc + k, vS + 12 + k))
        for k in range(4):
            a("v_add_f32 v%d, v%d, v%d" % (cAcc + k, cAcc + k, vS + 12 + k))
        for k in range(4):
            a("v_mul_f32 v%d, v%d, v%d" % (cAcc + k, cAcc + k, cL))
        a("v_cvt_pk_bf16_f32 v%d, v%d, v%d" % (cAcc, cAcc, cAcc + 1))
        a("v_cvt_pk_bf16_f32 v%d, v%d, v%d" % (cAcc + 1, cAcc + 2, cAcc + 3))
        a("s_mov_b32 exec_lo, -1")
        a("s_mov_b32 exec_hi, 0")
        a("global_store_dwordx2 v%d, %s, %s" % (vOA, vr(cAcc, 2), sp(sOUT)))
        a("s_mov_b64 exec, -1")
    else:
        tail3_code()
    if warm:
        a.raw("    ; WARM_END")
    a.label("L_exit")

    def stamps_out(slot_expr):
        stamp(11)
        a("v_writelane_b32 v%d, s%d, 12" % (vST, sN))
        a("s_getreg_b32 s3, hwreg(HW_REG_XCC_ID)")
        a("v_writelane_b32 v%d, s3, 14" % vST)
        a("s_getreg_b32 s3, hwreg(HW_REG_HW_ID)")
        a("v_writelane_b32 v%d, s3, 15" % vST)
        slot_expr()
        a("s_lshl_b32 s3, s3, 8")
        a("s_add_u32 s3, s3, 0x8000000")
        a("v_lshlrev_b32 v%d, 2, v%d" % (vT0, vLANE))
        a("v_add_u32 v%d, s3, v%d" % (vT0, vT0))
        a("global_store_dword v%d, v%d, %s" % (vT0, vST, sp(sWS)))
    if stamps:
        def sl():
            a("s_lshl_b32 s3, s2, 2")
            a("s_add_u32 s3, s3, s%d" % sW)
        stamps_out(sl)
    a.label("L_exit2")
    a("s_endpgm")

    if tail2 >= 2:
        sMASK = 54
        def chk(i):
            if i < 16:
                a("v_max3_u32 v%d, v%d, v%d, v%d" % (cT, cO(i), cO(i) + 1, cO(i) + 2))
                a("v_max_u32 v%d, v%d, v%d" % (cT, cT, cO(i) + 3))
            else:
                a("v_max_u32 v%d, v%d, v%d" % (cT, cML, cML + 1))
            a("v_cmp_eq_u32 vcc, -1, v%d" % cT)
        a.label("L_sel")
        a("s_mov_b32 s%d, 0" % sMASK)
        for i in range(17):
            chk(i)
            a("s_cmp_lg_u64 vcc, 0")
            a("s_cselect_b32 s3, 0x%x, 0" % (1 << i))
            a("s_or_b32 s%d, s%d, s3" % (sMASK, sMASK))
        a("s_lshl_b32 s5, s%d, 8" % sHX)
        a.label("L_poll")
        def each(fn, tag):
            for g in range(5):
                idxs = list(range(4 * g, min(4 * g + 4, 17)))
                lg = "L_%s_g%d" % (tag, g)
                if len(idxs) > 1:
                    a("s_and_b32 s3, s%d, 0x%x" % (sMASK, 0xf << (4 * g)))
                    a("s_cbranch_scc0 %s" % lg)
                for i in idxs:
                    li = "L_%s_%d" % (tag, i)
                    a("s_bitcmp1_b32 s%d, %d" % (sMASK, i))
                    a("s_cbranch_scc0 %s" % li)
                    fn(i, li)
                    a.label(li)
                if len(idxs) > 1:
                    a.label(lg)
        def ld1(i, li):
            if i < 16:
                a("s_add_u32 s4, s5, %d" % (i * 4096))
                a("buffer_load_dwordx4 %s, v%d, s[%d:%d], s4 offen sc1" % (vr(cO(i), 4), vCA0, WSRD, WSRD + 3))
            else:
                a("s_add_u32 s4, s5, %d" % REG_O)
                a("buffer_load_dwordx2 %s, v%d, s[%d:%d], s4 offen sc1" % (vr(cML, 2), vCM, WSRD, WSRD + 3))
        each(ld1, "pl")
        a("s_waitcnt vmcnt(0)")
        def ck1(i, li):
            chk(i)
            a("s_cbranch_vccnz %s" % li)
            a("s_bitset0_b32 s%d, %d" % (sMASK, i))
        each(ck1, "pc")
        a("s_add_u32 s%d, s%d, 1" % (sIT, sIT))
        a("s_cmp_gt_u32 s%d, 0x400000" % sIT)
        a("s_cbranch_scc1 L_combfin")
        a("s_cmp_lg_u32 s%d, 0" % sMASK)
        a("s_cbranch_scc1 L_poll")
        a("s_branch L_comb_use")

    if deep:
        a.label("L_deepdisp")
        for k in range(1, DM):
            a("s_cmp_eq_u32 s%d, %d" % (sSTAGE, D + k))
            a("s_cbranch_scc1 L_st%d" % (D + k))
        for k in range(DM):
            stage_body(k, DM, D, False)

    a.label("L_slowstart")
    get_consts("S", DM + 2 * (DM - 1))
    a("v_lshlrev_b32 v%d, 5, v%d" % (vT0, vLANE))
    a("v_add_u32 v%d, s%d, v%d" % (vT0, sSPLIT, vT0))
    a("v_lshlrev_b32 v%d, 3, v%d" % (vT0, vT0))
    a("ds_read_b64 %s, v%d offset:%d" % (vr(vS + 12, 2), vT0, L_LIST))
    a("s_waitcnt vmcnt(0) lgkmcnt(0)")
    for k in range(DM):
        if k == D:
            a("s_cmp_lt_u32 s%d, %d" % (sLK, deep))
            a("s_cbranch_scc0 L_loop")
        a("v_readlane_b32 s%d, v%d, %d" % (sOFF, vS + 12, k))
        a("v_readlane_b32 s%d, v%d, %d" % (sDESC + k, vS + 13, k))
        a("s_add_u32 s3, s%d, %d" % (sSPLIT, 32 * k))
        a("s_cmp_lt_u32 s3, s%d" % sU)
        a("s_cselect_b32 s%d, 0x%x, 0" % (KS + 2, CACHE_BYTES))
        a("s_cselect_b32 s%d, s%d, 0" % (sDESC + k, sDESC + k))
        a("s_cselect_b32 s%d, s%d, 0" % (sOFF, sOFF))
        a("s_mov_b32 s%d, s%d" % (VS + 2, KS + 2))
        dummyC(k)
        issue(k)
    a("s_branch L_loop")

    a.label("L_getconst")
    get_consts("F", (NL - 1 + DM + 2 * (DM - 1)) if deep else (NL + D + 2 * LEAD))
    stamp(4)
    a("s_branch L_loop")

    e0, e1, e2 = vU, vU + 1, vU + 2
    a.label("L_elect")
    a("s_waitcnt lgkmcnt(0)")
    a("s_mov_b32 s5, 0")
    a.label("L_el_poll")
    a("s_mov_b64 exec, 1")
    a("global_load_dword v%d, v%d, %s sc1" % (e0, vLA, sp(sDBG)))
    a("s_mov_b64 exec, -1")
    a("s_waitcnt vmcnt(0)")
    a("v_readfirstlane_b32 s4, v%d" % e0)
    a("s_lshr_b32 s4, s4, 16")
    a("s_cmp_lg_u32 s4, 0")
    a("s_cbranch_scc1 L_el_ret")
    a("s_add_u32 s5, s5, 1")
    a("s_cmp_lg_u32 s5, 12")
    a("s_cbranch_scc1 L_el_poll")
    a("s_mov_b64 exec, 1")
    a("global_atomic_add v%d, v%d, v%d, %s sc0" % (e0, vLA, vONE, sp(sDBG)))
    a("s_mov_b64 exec, -1")
    a("s_waitcnt vmcnt(0)")
    a("v_readfirstlane_b32 s4, v%d" % e0)
    a("s_and_b32 s4, s4, 0xffff")
    a("s_cmp_lg_u32 s4, 0")
    a("s_cbranch_scc1 L_el_poll")
    a("s_lshl_b32 s4, s%d, 8" % sW)
    a("v_lshlrev_b32 v%d, 8, v%d" % (e1, vLANE))
    a("v_add_u32 v%d, v%d, v%d" % (e1, e1, vCA))
    a("v_subrev_u32 v%d, s4, v%d" % (e1, e1))
    a("v_mov_b32 v%d, 0" % e2)
    a("s_mov_b64 exec, 0xff")
    a("global_atomic_swap v%d, v%d, v%d, %s sc0" % (e0, e1, e2, sp(sWS)))
    a("s_waitcnt vmcnt(0)")
    a("v_mov_b32 v%d, 0x10000" % e2)
    a("s_mov_b64 exec, 1")
    a("global_atomic_add v%d, v%d, %s" % (vLA, e2, sp(sDBG)))
    a("s_mov_b64 exec, -1")
    a("s_waitcnt vmcnt(0)")
    a.label("L_el_ret")
    a("s_mov_b32 s%d, 1" % sFOK)
    a("s_branch L_loop")

    a.label("L_builder")
    E = lambda r, b: 32 + 2 * (4 * r + b)
    bJ = 96
    bNV = 100
    bL16 = 104
    bA, bB, bD = 105, 106, 108
    bT0, bT1 = 113, 114
    sVm = {0: 52, 1: 54, 2: 56, 3: 58}
    sLd = {0: 52, 1: 60, 2: 62, 3: 64}
    sE = {(0, 1): 66, (0, 2): 68, (0, 3): 70, (1, 2): 72, (1, 3): 74, (2, 3): 76}
    sM = {0: 78, 1: 80, 2: 82}
    sT = 84
    sCNT = 86
    ctx_load()
    if bdelay:
        a("s_mov_b32 s3, %d" % bdelay)
        a.label("L_b_delay0")
        a("s_sub_u32 s3, s3, 1")
        a("s_cmp_lg_u32 s3, 0")
        a("s_cbranch_scc1 L_b_delay0")
    a("v_lshlrev_b32 v%d, 2, v%d" % (bJ, vLANE))
    for b in range(1, 4):
        a("v_add_u32 v%d, %d, v%d" % (bJ + b, b * 2048, bJ))
    for r in range(8):
        for b in range(4):
            a("global_load_dword v%d, v%d, %s offset:%d" % (E(r, b), bJ + b, sp(sBT), r * 256))
    a("s_lshl_b32 s3, s%d, 2" % sHG)
    a("s_mul_i32 s3, s3, %d" % REGION)
    a("s_lshl_b32 s4, s%d, 11" % sSPLIT)
    a("s_add_u32 s4, s4, s3")
    a("v_lshlrev_b32 v%d, 4, v%d" % (bL16, vLANE))
    a("v_add_u32 v%d, s4, v%d" % (bA, bL16))
    a("v_lshrrev_b32 v%d, 2, v%d" % (bB, vLANE))
    a("v_mul_u32_u24 v%d, %d, v%d" % (bB, REGION, bB))
    a("v_and_b32 v%d, 3, v%d" % (bT0, vLANE))
    a("v_lshl_add_u32 v%d, v%d, 8, v%d" % (bB, bT0, bB))
    a("s_lshl_b32 s4, s%d, 3" % sSPLIT)
    a("s_add_u32 s4, s4, s3")
    a("s_add_u32 s4, s4, %d" % REG_O)
    a("v_add_u32 v%d, s4, v%d" % (bB, bB))
    for k in range(4):
        a("v_mov_b32 v%d, -1" % (bD + k))
    def b_prefill():
        for b in range(4):
            a("global_store_dwordx4 v%d, %s, %s sc1" % (bA, vr(bD, 4), sp(sWS)))
            a("global_store_dwordx4 v%d, %s, %s offset:1024 sc1" % (bA, vr(bD, 4), sp(sWS)))
            if b < 3:
                a("v_add_u32 v%d, %d, v%d" % (bA, REGION, bA))
        a("s_mov_b64 exec, 0xffff")
        a("global_store_dwordx2 v%d, %s, %s sc1" % (bB, vr(bD, 2), sp(sWS)))
        a("s_mov_b64 exec, -1")
    if pfpos == 0:
        b_prefill()
    a("v_mov_b32 v%d, 1" % vINI)
    a("s_mov_b32 s%d, s%d" % (sX_ := 94, sSPLIT))
    if nopref:
        a("s_or_b32 s94, s94, 64")
    a("s_cmp_lg_u32 s94, 0")
    a("s_cbranch_scc1 L_b_noel")
    a("s_mov_b64 exec, 1")
    a("global_atomic_add v%d, v%d, v%d, %s sc0" % (vINI, vLA, vONE, sp(sDBG)))
    a("s_mov_b64 exec, -1")
    a.label("L_b_noel")
    for i in range(8):
        a("s_mov_b32 s%d, 0" % (sCNT + i))
    a("s_waitcnt lgkmcnt(0)")
    ctx_norm()
    for r in range(8):
        hf = r >> 2
        if r == 0:
            a("s_waitcnt vmcnt(%d)" % (9 if pfpos == 0 else 0))
            stamp(2)
            if pfpos == 1:
                b_prefill()
        ID = lambda b: E(r, b)
        CW = lambda b: E(r, b) + 1
        for b in range(4):
            a("s_sub_u32 s3, s%d, %d" % (sCE + b, r * 1024))
            a("v_sub_u32 v%d, s3, v%d" % (bNV + b, bL16))
            a("v_med3_i32 v%d, v%d, 0, 16" % (bNV + b, bNV + b))
        for b in range(4):
            a("v_cmp_lt_u32 %s, 0, v%d" % (sp(sVm[b]), bNV + b))
        for b in range(1, 4):
            a("v_lshlrev_b32 v%d, %d, v%d" % (bNV + b, 8 * b, bNV + b))
        for b in range(4):
            a("v_cmp_gt_i32 vcc, 0, v%d" % ID(b))
            a("v_add_u32 v%d, 1280, v%d" % (bT0, ID(b)))
            a("v_cndmask_b32 v%d, v%d, v%d, vcc" % (ID(b), ID(b), bT0))
            a("v_min_u32 v%d, 1279, v%d" % (ID(b), ID(b)))
        for (x, y), s in sE.items():
            a("v_cmp_eq_u32 %s, v%d, v%d" % (sp(s), ID(x), ID(y)))
        for x in range(4):
            first = True
            for y in range(x + 1, 4):
                a("v_cndmask_b32 v%d, 0, v%d, %s" % (bT0, bNV + y, sp(sE[(x, y)])))
                a("v_or_b32 v%d, v%d, v%d" % (CW(x), bT0, bNV + x if first else CW(x)))
                first = False
            if first:
                a("v_or_b32 v%d, %d, v%d" % (CW(x), x << 5, bNV + x))
        for y in range(1, 4):
            for x in range(y):
                a("s_and_b64 %s, %s, %s" % (sp(sT), sp(sVm[x]), sp(sE[(x, y)])))
                src = sp(sVm[y]) if x == 0 else sp(sLd[y])
                a("s_andn2_b64 %s, %s, %s" % (sp(sLd[y]), src, sp(sT)))
        for x in range(3):
            for y in range(x + 1, 4):
                if y == x + 1:
                    a("s_and_b64 %s, %s, %s" % (sp(sM[x]), sp(sE[(x, y)]), sp(sVm[y])))
                else:
                    a("s_and_b64 %s, %s, %s" % (sp(sT), sp(sE[(x, y)]), sp(sVm[y])))
                    a("s_or_b64 %s, %s, %s" % (sp(sM[x]), sp(sM[x]), sp(sT)))
        for x in range(3):
            a("v_mov_b32 v%d, %d" % (bT0, x << 5))
            a("v_mov_b32 v%d, %d" % (bT1, 4 << 5))
            a("v_cndmask_b32 v%d, v%d, v%d, %s" % (bT0, bT0, bT1, sp(sM[x])))
            a("v_or_b32 v%d, v%d, v%d" % (CW(x), CW(x), bT0))
        for x in range(4):
            a("v_lshlrev_b32 v%d, 17, v%d" % (ID(x), ID(x)))
            a("v_cndmask_b32 v%d, 0, v%d, %s" % (CW(x), CW(x), sp(sLd[x])))
            a("s_bcnt1_i32_b64 s3, %s" % sp(sLd[x]))
            a("s_add_u32 s%d, s%d, s3" % (sCNT + hf * 4 + x, sCNT + hf * 4 + x))
    stamp(3)
    if pfpos == 2:
        b_prefill()
    a("s_mov_b32 s4, 0")
    for c in range(8):
        a("s_mov_b32 s3, s%d" % (sCNT + c))
        a("s_mov_b32 s%d, s4" % (sCNT + c))
        a("s_add_u32 s4, s4, s3")
    a("s_add_u32 s95, s4, 1")
    for r in range(8):
        hf = r >> 2
        for b in range(4):
            c = sCNT + hf * 4 + b
            a("v_cmp_ne_u32 %s, 0, v%d" % (sp(sT), E(r, b) + 1))
            a("v_mbcnt_lo_u32_b32 v%d, s%d, 0" % (bT0, sT))
            a("v_mbcnt_hi_u32_b32 v%d, s%d, v%d" % (bT0, sT + 1, bT0))
            a("v_add_lshl_u32 v%d, v%d, s%d, 3" % (bT0, bT0, c))
            a("s_bcnt1_i32_b64 s3, %s" % sp(sT))
            a("s_mov_b64 exec, %s" % sp(sT))
            a("ds_write_b64 v%d, %s offset:%d" % (bT0, vr(E(r, b), 2), L_LIST))
            a("s_mov_b64 exec, -1")
            a("s_add_u32 s%d, s%d, s3" % (c, c))
    if slowb:
        a("s_mov_b32 s3, %d" % slowb)
        a.label("L_b_delay")
        a("s_sub_u32 s3, s3, 1")
        a("s_cmp_lg_u32 s3, 0")
        a("s_cbranch_scc1 L_b_delay")
    a("v_mov_b32 v%d, s95" % bT1)
    a("s_waitcnt vmcnt(0) lgkmcnt(0)")
    a("ds_write_b32 v%d, v%d offset:%d" % (vZ, bT1, L_FLAG))
    if tail2:
        a("s_mov_b64 exec, 1")
        a("global_atomic_add v%d, v%d, %s offset:4" % (vLA, vONE, sp(sDBG)))
        a("s_mov_b64 exec, -1")
    stamp(4)
    a("v_readfirstlane_b32 s3, v%d" % vINI)
    a("s_and_b32 s3, s3, 0xffff")
    a("s_cmp_lg_u32 s3, 0")
    a("s_cbranch_scc1 L_b_end")
    a("s_lshl_b32 s3, s%d, 11" % sHG)
    a("s_add_u32 s3, s3, 0x%x" % CTR_OFF)
    a("v_lshlrev_b32 v%d, 8, v%d" % (bT0, vLANE))
    a("v_add_u32 v%d, s3, v%d" % (bT0, bT0))
    a("v_mov_b32 v%d, 0" % bT1)
    a("s_mov_b64 exec, 0xff")
    a("global_atomic_swap v%d, v%d, v%d, %s sc0" % (bNV, bT0, bT1, sp(sWS)))
    a("s_waitcnt vmcnt(0)")
    a("v_mov_b32 v%d, 0x10000" % bT1)
    a("s_mov_b64 exec, 1")
    a("global_atomic_add v%d, v%d, %s" % (vLA, bT1, sp(sDBG)))
    a("s_mov_b64 exec, -1")
    a.label("L_b_end")
    if stamps:
        a("s_mov_b32 s%d, 0" % sN)
        def sl2():
            a("s_add_u32 s3, s2, 1024")
        stamps_out(sl2)
    a("s_waitcnt lgkmcnt(0)")
    if warm:
        a("s_waitcnt vmcnt(0)")
        a("s_mov_b64 exec, 0")
        a("s_branch L_wp0")
    else:
        a("s_endpgm")
    a.label("L_code_end")

    body = a.text()
    hdr = HEADER + "; @launch grid=(256,1,1) block=(320,1,1) lds=%d\n" % LDS_BYTES
    nvv = (NV + 3) // 4 * 4
    tail = """.section .rodata,"a"
.p2align 6
.amdhsa_kernel %s_kernel
  .amdhsa_next_free_vgpr %d
  .amdhsa_next_free_sgpr %d
  .amdhsa_accum_offset %d
  .amdhsa_group_segment_fixed_size 0
  .amdhsa_kernarg_size 64
  .amdhsa_user_sgpr_count 2
  .amdhsa_user_sgpr_kernarg_segment_ptr 1
  .amdhsa_system_sgpr_workgroup_id_x 1
.end_amdhsa_kernel
""" % (NAME, nvv, 102, nvv)
    if warm:
        from warmpass import warm as warmfn
        t, n = warmfn(hdr + body + tail, warm)
        sys.stderr.write("warm pads: %d\n" % n)
        return t
    return hdr + body + tail


if __name__ == "__main__":
    ap = argparse.ArgumentParser()
    ap.add_argument("-D", type=int, default=3)
    ap.add_argument("--ld", default="nt")
    ap.add_argument("--fnum", type=int, default=4)
    ap.add_argument("--stamps", type=int, default=0)
    ap.add_argument("--nopref", type=int, default=0)
    ap.add_argument("--prio", type=int, default=0)
    ap.add_argument("--nl", type=int, default=None)
    ap.add_argument("--slowb", type=int, default=0)
    ap.add_argument("--qpos", type=int, default=0)
    ap.add_argument("--bdelay", type=int, default=0)
    ap.add_argument("--pfpos", type=int, default=0)
    ap.add_argument("--warm", type=int, default=0)
    ap.add_argument("--tail2", type=int, default=0)
    ap.add_argument("--tail3", type=int, default=0)
    ap.add_argument("--psets", type=int, default=1)
    ap.add_argument("--pslp", type=int, default=0)
    ap.add_argument("--tlbw", type=int, default=0)
    ap.add_argument("--lead", type=int, default=0)
    ap.add_argument("--deep", type=int, default=0)
    ap.add_argument("--ldspad", type=int, default=84 * 1024)
    ap.add_argument("-o", required=True)
    args = ap.parse_args()
    open(args.o, "w").write(gen(args.D, args.ld, args.fnum, args.stamps, args.ldspad, args.nopref, args.prio, args.nl, 4, args.slowb, args.qpos, args.bdelay, args.warm, args.pfpos, args.tail2, args.tail3, args.psets, args.pslp, args.tlbw, args.lead, args.deep))
```

```python
import sys, argparse, struct, math
sys.path.insert(0, "gen")
from asmlib import Asm

NAME = "standalone__paged_block_table_kv_radixattention__decode"

HEADER = """; Kernarg layout for this problem (64 bytes, ptrs only, base s[0:1]):
"""


def f32bits(x):
    return struct.unpack("<I", struct.pack("<f", x))[0]


def gen(D=3, ld="nt", fnum=4, stamps=0, lds_pad=84 * 1024, nopref=0, prio=0, nl=None, ncomb=4, slowb=0, qpos=0, bdelay=0, warm=0, pfpos=0, tail2=0, tail3=0, psets=1, pslp=0, tlbw=0, lead=0, deep=0, hst=0, cnt=0):
    CACHE_BYTES = 1280 * 131072
    REG_O = 32 * 2048
    REGION = REG_O + 1024
    CTR_OFF = 0x400000
    LEAD = D - 1
    assert LEAD >= 1
    WAITN = 8 * (D - 1) + (D - 2)
    NL = 8 - D if nl is None else nl
    assert 0 <= NL <= 8 - D
    a = Asm()
    if tail3:
        tail2 = 1
        assert tail3 in (16, 32)
        ncomb = tail3

    sQ, sK, sV, sBT, sCTX, sOUT, sDBG, sWS = 8, 10, 12, 14, 16, 18, 20, 22
    KS, VS = 24, 28
    sCE = 32
    sW, sHG, sSPLIT = 36, 37, 38
    sC, sHI = 39, 40
    sN, sU, sSTAGE = 41, 42, 43
    sCUR, sOFF = 44, 45
    sNV = 46
    sTYPE, sSS = 50, 51
    sDESC = 60
    sNC, sDYN0, sEXH, sFOK, sNEW, sP, sCL = 64, 65, 66, 67, 68, 69, 70
    sNF = 71
    sSTOPN = 72
    sLOK = 73
    sQZ = 96
    sRECO, sREGO = 74, 75
    sLK, sX2 = 80, 81
    sDL, sLD = 82, 83
    WSRD = 76 if tail3 else 60

    def sp(x):
        return "s[%d:%d]" % (x, x + 1)

    vLANE = 1
    vOFF = 2
    vTOK, vNEG, vCA, vONE = 6, 7, 8, 9
    vT0, vT1 = 10, 11
    vQ = 12
    vO = 28
    vM = 60
    vL = 64
    vS = 68
    vA = 84
    vPB = 92
    vU = 100
    vW = 116
    vR = 148
    DM = D + 1 if deep else D
    if deep:
        assert D == 2 and qpos == 1 and not lead and not tail3 and stamps != 3
    vCLM = vR + 32 * DM
    vLA = vCLM + DM
    vINI = vLA + 1
    vZ = vINI + 1
    vPK = vZ + 1
    NV = vPK + 1
    vLW0, vLW1, vLR0, vLR1, vL16p, vSTM, vCD, vCD2, vCMa, vOAp = range(NV, NV + 10)
    if tail3:
        NV += 10
    vST = NV
    if stamps:
        NV += 1
    NV = max(NV, 160)
    assert NV <= 256

    def vr(x, n):
        return "v[%d:%d]" % (x, x + n - 1)

    def stamp(idx):
        if not stamps:
            return
        a("s_memrealtime s[100:101]")
        a("s_waitcnt lgkmcnt(0)")
        a("v_writelane_b32 v%d, s100, %s" % (vST, idx))

    L_FLAG, L_LIST = 0, 256
    L_ML = L_LIST + 2048 * 8
    L_OB = L_ML + 512
    LDS_USED = L_OB + 16 * 2048
    LDS_BYTES = max(LDS_USED, lds_pad)

    def issue(k, st=None):
        base = vR + 32 * k
        for i in range(4):
            a("buffer_load_dwordx4 %s, v%d, s[%d:%d], s%d offen %s" % (vr(base + 4 * i, 4), vOFF + i, KS, KS + 3, sOFF, ld))
            if st is not None:
                stamp(st + i)
        for i in range(4):
            a("buffer_load_dwordx4 %s, v%d, s[%d:%d], s%d offen %s" % (vr(base + 16 + 4 * i, 4), vOFF + i, VS, VS + 3, sOFF, ld))
            if st is not None:
                stamp(st + 4 + i)

    def dummyC(k):
        a("global_load_dword v%d, v%d, %s" % (vCLM + k, vZ, sp(sBT)))

    def ctx_load():
        a("s_load_dwordx4 s[%d:%d], %s, 0" % (sCE, sCE + 3, sp(sCTX)))

    def ctx_norm():
        a("s_mov_b32 s%d, 0" % sQZ)
        for b in range(4):
            a("s_cmp_le_i32 s%d, 0" % (sCE + b))
            a("s_cselect_b32 s3, %d, 0" % (1 << b))
            a("s_cselect_b32 s%d, 8192, s%d" % (sCE + b, sCE + b))
            a("s_or_b32 s%d, s%d, s3" % (sQZ, sQZ))
            a("s_min_i32 s%d, s%d, 8192" % (sCE + b, sCE + b))

    def get_consts(tag, ssmin):
        e0 = vU
        a("s_waitcnt lgkmcnt(0)")
        a.label("L_gc_spin%s" % tag)
        a("ds_read_b32 v%d, v%d offset:%d" % (e0, vZ, L_FLAG))
        a("s_waitcnt lgkmcnt(0)")
        a("v_readfirstlane_b32 s%d, v%d" % (sU, e0))
        a("s_cmp_eq_u32 s%d, 0" % sU)
        a("s_cbranch_scc1 L_gc_spin%s" % tag)
        a("s_sub_u32 s%d, s%d, 1" % (sU, sU))
        a("s_mul_i32 s%d, s%d, %d" % (sSS, sU, fnum))
        a("s_lshr_b32 s%d, s%d, 8" % (sSS, sSS))
        a("s_max_u32 s%d, s%d, %d" % (sSS, sSS, ssmin))
        a("s_lshl_b32 s%d, s%d, 5" % (sDYN0, sSS))
        if deep:
            a("s_sub_u32 s%d, s%d, s%d" % (sNC, sSS, sDL))
            a("s_sub_u32 s%d, s%d, s%d" % (sNF, sNC, sLD))
        else:
            a("s_sub_u32 s%d, s%d, %d" % (sNC, sSS, D + LEAD))
            a("s_sub_u32 s%d, s%d, %d" % (sNF, sNC, LEAD))

    a.raw(".amdgcn_target \"amdgcn-amd-amdhsa--gfx950\"")
    a.raw(".text")
    a.raw(".globl %s_kernel" % NAME)
    a.raw(".p2align 8")
    a.raw(".type %s_kernel,@function" % NAME)
    a.raw("%s_kernel:" % NAME)
    a("s_cmp_ge_u32 s2, 256")
    a("s_cbranch_scc1 L_exit2")
    if stamps:
        a("v_mov_b32 v%d, 0" % vST)
        stamp(0)
    if hst:
        assert not stamps
        a("s_memrealtime s[100:101]")
    a("s_load_dwordx16 s[8:23], s[0:1], 0")
    a("v_mov_b32 v%d, 0" % vZ)
    a("ds_write_b32 v%d, v%d offset:%d" % (vZ, vZ, L_FLAG))
    a("v_and_b32 v%d, 63, v0" % vLANE)
    a("v_lshrrev_b32 v%d, 6, v0" % vT0)
    a("v_readfirstlane_b32 s%d, v%d" % (sW, vT0))
    a("s_lshr_b32 s3, s2, 6")
    a("s_lshl_b32 s3, s3, 3")
    a("s_and_b32 s4, s2, 7")
    a("s_or_b32 s%d, s3, s4" % sSPLIT)
    a("s_bfe_u32 s%d, s2, 0x30003" % sHG)
    a("s_mov_b32 s%d, 0x%08x" % (sC, f32bits(128 ** -0.5 * math.log2(math.e))))
    a("s_mov_b32 s%d, 0xffff0000" % sHI)
    t0, t1, t2, t3 = vS, vS + 1, vS + 2, vS + 3
    a("v_lshlrev_b32 v%d, 4, v%d" % (t1, vLANE))
    a("s_lshl_b32 s3, s%d, 10" % sHG)
    a("v_add_u32 v%d, s3, v%d" % (t3, t1))
    a("s_lshl_b32 s4, s%d, 2" % sW)
    a("s_lshl_b32 s5, s4, 13")
    a("v_add_u32 v%d, s5, v%d" % (vOFF, t3))
    for i in range(1, 4):
        a("v_add_u32 v%d, %d, v%d" % (vOFF + i, i * 8192, vOFF))
    a("v_bfe_u32 v%d, v%d, 2, 1" % (t2, vLANE))
    a("v_bfe_u32 v%d, v%d, 3, 1" % (vTOK, vLANE))
    a("v_lshlrev_b32 v%d, 1, v%d" % (vTOK, vTOK))
    a("v_or3_b32 v%d, v%d, v%d, s4" % (vTOK, vTOK, t2))
    a("v_mov_b32 v%d, 0xff800000" % vNEG)
    a("v_mov_b32 v%d, 1" % vONE)
    vQo = vS + 6
    for b in range(1, 4):
        a("v_add_u32 v%d, %d, v%d" % (vQo + b - 1, b * 8192, t3))
    a("s_lshl_b32 s3, s%d, 3" % sHG)
    a("s_add_u32 s3, s3, s%d" % sW)
    a("s_lshl_b32 s3, s3, 8")
    a("s_add_u32 s3, s3, 0x%x" % CTR_OFF)
    a("v_mov_b32 v%d, s3" % vCA)
    if cnt:
        a("s_lshl_b32 s3, s%d, 2" % sHG)
        a("s_add_u32 s3, s3, 128")
    else:
        a("s_lshl_b32 s3, s%d, 5" % sHG)
    a("v_mov_b32 v%d, s3" % vLA)
    vEK, vEB, vEI, vEP = vS + 10, vS + 11, vS + 12, vS + 13
    a("v_bfe_u32 v%d, v%d, 2, 3" % (vEK, vLANE))
    a("v_and_b32 v%d, 3, v%d" % (vEB, vLANE))
    vEA = vS + 9
    a("v_lshlrev_b32 v%d, 7, v%d" % (vEA, vEK))
    a("v_lshl_add_u32 v%d, v%d, 11, v%d" % (vEA, vEB, vEA))
    a("s_lshl_b32 s5, s%d, 2" % sSPLIT)
    a("v_add_u32 v%d, s5, v%d" % (vEA, vEA))
    a("s_waitcnt lgkmcnt(0)")
    a("s_barrier")
    stamp(1)
    a("s_cmp_eq_u32 s%d, 4" % sW)
    a("s_cbranch_scc1 L_builder")
    if prio:
        a("s_setprio %d" % prio)
    a("s_add_u32 s6, s%d, s5" % sBT)
    a("s_addc_u32 s7, s%d, 0" % (sBT + 1))
    for k in range(D):
        a("s_load_dword s%d, s[6:7], 0x%x" % (sDESC + k, 128 * k))
    if lead:
        a("s_load_dword s%d, s[6:7], 0x%x" % (sX2, 128 * D))
    if deep:
        a("s_load_dword s%d, s[6:7], 0x%x" % (sDESC + D, 128 * D))
    ctx_load()
    def idq_loads():
        a("global_load_dword v%d, v%d, %s" % (vEI, vEA, sp(sBT)))
        a("global_load_dwordx4 %s, v%d, %s" % (vr(vQ, 4), t3, sp(sQ)))
        for b in range(1, 4):
            a("global_load_dwordx4 %s, v%d, %s" % (vr(vQ + 4 * b, 4), vQo + b - 1, sp(sQ)))
        stamp(63)
    if qpos == 0:
        idq_loads()
    a("s_mov_b32 s%d, s%d" % (KS, sK))
    a("s_and_b32 s%d, s%d, 0xffff" % (KS + 1, sK + 1))
    a("s_mov_b32 s%d, 0x%x" % (KS + 2, CACHE_BYTES))
    a("s_mov_b32 s%d, 0x00020000" % (KS + 3))
    a("s_mov_b32 s%d, s%d" % (VS, sV))
    a("s_and_b32 s%d, s%d, 0xffff" % (VS + 1, sV + 1))
    a("s_mov_b32 s%d, 0x%x" % (VS + 2, CACHE_BYTES))
    a("s_mov_b32 s%d, 0x00020000" % (VS + 3))
    if lead or deep:
        a("s_sub_u32 s%d, 7, s%d" % (sLK, sHG))
        a("s_lshl_b32 s%d, s%d, 5" % (sLK, sLK))
        a("s_add_u32 s%d, s%d, s%d" % (sLK, sLK, sSPLIT))
    a("s_waitcnt lgkmcnt(0)")
    if lead:
        a("s_cmp_lt_u32 s%d, %d" % (sLK, lead))
        a("s_cbranch_scc0 L_nolead")
        a("s_add_u32 s3, s%d, 1280" % sDESC)
        a("s_cmp_lt_i32 s%d, 0" % sDESC)
        a("s_cselect_b32 s3, s3, s%d" % sDESC)
        a("s_min_u32 s3, s3, 1279")
        a("s_lshl_b32 s%d, s3, 17" % sOFF)
        issue((vW - vR) // 32)
        for k in range(D - 1):
            a("s_mov_b32 s%d, s%d" % (sDESC + k, sDESC + k + 1))
        a("s_mov_b32 s%d, s%d" % (sDESC + D - 1, sX2))
        a.label("L_nolead")
    def first_issue(k):
        a("s_add_u32 s3, s%d, 1280" % (sDESC + k))
        a("s_cmp_lt_i32 s%d, 0" % (sDESC + k))
        a("s_cselect_b32 s3, s3, s%d" % (sDESC + k))
        a("s_min_u32 s3, s3, 1279")
        a("s_lshl_b32 s%d, s3, 17" % sOFF)
        dummyC(k)
        issue(k, (16 + 8 * k) if stamps == 3 else None)
        stamp(60 + k)
    if deep:
        first_issue(0)
        a("s_cmp_lt_u32 s%d, %d" % (sLK, deep))
        a("s_cbranch_scc0 L_nodeep")
        first_issue(1)
        idq_loads()
        first_issue(2)
        a("s_branch L_deepjoin")
        a.label("L_nodeep")
        idq_loads()
        first_issue(1)
        a.label("L_deepjoin")
    else:
        for k in range(D):
            first_issue(k)
            if qpos == k + 1:
                idq_loads()
    stamp(3)
    for b in range(4):
        for k in range(8):
            a("v_mov_b32 v%d, 0" % (vO + 8 * b + k))
        a("v_mov_b32 v%d, 0xf149f2ca" % (vM + b))
        a("v_mov_b32 v%d, 0" % (vL + b))
    ctx_norm()
    vEC, vEN = vS + 14, vS + 15
    a("v_mov_b32 v%d, s%d" % (vEC, sCE))
    for b in range(1, 4):
        a("s_mov_b32 exec_lo, 0x%08x" % (0x11111111 << b))
        a("s_mov_b32 exec_hi, 0x%08x" % (0x11111111 << b))
        a("v_mov_b32 v%d, s%d" % (vEC, sCE + b))
    a("s_mov_b64 exec, -1")
    a("v_lshlrev_b32 v%d, 9, v%d" % (vT0, vEK))
    a("s_lshl_b32 s3, s%d, 4" % sSPLIT)
    a("v_add_u32 v%d, s3, v%d" % (vT0, vT0))
    a("v_sub_u32 v%d, v%d, v%d" % (vEN, vEC, vT0))
    a("v_med3_i32 v%d, v%d, 0, 16" % (vEN, vEN))
    a("v_lshlrev_b32 v%d, 3, v%d" % (vT1, vEB))
    a("v_lshlrev_b32 v%d, v%d, v%d" % (vEN, vT1, vEN))
    a("v_lshrrev_b32 v%d, 1, v%d" % (vT0, vT0))
    a("s_mov_b32 s%d, 0x1000" % sSS)
    a("s_mov_b32 s%d, 0x1000" % sU)
    a("s_mov_b32 s%d, -1" % sNC)
    if deep:
        a("s_cmp_lt_u32 s%d, %d" % (sLK, deep))
        a("s_cselect_b32 s%d, %d, %d" % (sNF, NL - 1, NL))
        a("s_cselect_b32 s%d, %d, %d" % (sDL, 2 * D + 1, 2 * D - 1))
        a("s_cselect_b32 s%d, %d, %d" % (sLD, D, D - 1))
        a("s_cselect_b32 s%d, %d, 0" % (sSTAGE, D))
    else:
        a("s_mov_b32 s%d, %d" % (sNF, NL))
    a("s_mov_b32 s%d, 0" % sDYN0)
    a("s_mov_b32 s%d, 0" % sEXH)
    a("s_mov_b32 s%d, -1" % sSTOPN)
    a("s_mov_b32 s%d, 0" % sFOK)
    a("s_mov_b32 s%d, 0" % sN)
    if not deep:
        a("s_mov_b32 s%d, 0" % sSTAGE)
    if tail3:
        cb = 3 if tail3 == 16 else 2
        tA, tB = vA, vA + 1
        a("v_lshlrev_b32 v%d, 4, v%d" % (vL16p, vLANE))
        a("s_lshl_b32 s3, s%d, 13" % sW)
        a("v_add_u32 v%d, s3, v%d" % (vLW0, vL16p))
        a("s_lshl_b32 s3, s%d, 11" % sW)
        a("v_add_u32 v%d, s3, v%d" % (vLR0, vL16p))
        a("v_lshrrev_b32 v%d, 4, v%d" % (tA, vLANE))
        a("v_lshlrev_b32 v%d, 3, v%d" % (tB, tA))
        a("s_lshl_b32 s3, s%d, 7" % sW)
        a("v_add_u32 v%d, s3, v%d" % (vLW1, tB))
        a("s_lshl_b32 s3, s%d, 5" % sW)
        a("v_add_u32 v%d, s3, v%d" % (vLR1, tB))
        a("s_lshl_b32 s3, s%d, 3" % sSPLIT)
        a("v_lshlrev_b32 v%d, 8, v%d" % (vSTM, tA))
        a("v_add_u32 v%d, s3, v%d" % (vSTM, vSTM))
        a("v_and_b32 v%d, 1, v%d" % (tB, tA))
        a("v_lshlrev_b32 v%d, 2, v%d" % (tB, tB))
        a("v_and_b32 v%d, 2, v%d" % (tA, tA))
        a("v_add_u32 v%d, v%d, v%d" % (tB, tB, tA))
        a("v_and_b32 v%d, %d, v%d" % (tA, (1 << cb) - 1, vLANE))
        a("v_lshl_add_u32 v%d, v%d, 4, v%d" % (tB, tA, tB))
        a("s_lshl_b32 s3, s%d, 13" % sW)
        a("s_lshl_b32 s4, s%d, 10" % sHG)
        a("s_add_u32 s3, s3, s4")
        a("v_add_u32 v%d, s3, v%d" % (vOAp, tB))
        a("v_lshrrev_b32 v%d, %d, v%d" % (tB, cb, vLANE))
        nrec = 32 >> (6 - cb)
        a("v_mul_u32_u24 v%d, %d, v%d" % (vCD, nrec * 2048, tB))
        a("v_lshl_add_u32 v%d, v%d, 4, v%d" % (vCD, tA, vCD))
        a("v_add_u32 v%d, 4096, v%d" % (vCD2, vCD))
        a("v_mul_u32_u24 v%d, %d, v%d" % (vCMa, nrec * 8, tB))
        a("s_lshl_b32 s3, s%d, 2" % sHG)
        a("s_add_u32 s3, s3, s%d" % sW)
        a("s_mul_i32 s3, s3, %d" % REGION)
        a("s_add_u32 s%d, s%d, s3" % (WSRD, sWS))
        a("s_addc_u32 s%d, s%d, 0" % (WSRD + 1, sWS + 1))
        a("s_and_b32 s%d, s%d, 0xffff" % (WSRD + 1, WSRD + 1))
        a("s_mov_b32 s%d, %d" % (WSRD + 2, REGION))
        a("s_mov_b32 s%d, 0x00020000" % (WSRD + 3))
        a("s_lshl_b32 s%d, s%d, 11" % (sRECO, sSPLIT))
        a("s_mov_b32 s%d, %d" % (sREGO, REG_O))
    a("s_waitcnt vmcnt(%d)" % (9 * (D - qpos)))
    stamp(2)
    full = "row_mask:0xf bank_mask:0xf"
    a("v_cmp_gt_i32 vcc, 0, v%d" % vEI)
    a("v_add_u32 v%d, 1280, v%d" % (vT1, vEI))
    a("v_cndmask_b32 v%d, v%d, v%d, vcc" % (vEI, vEI, vT1))
    a("v_min_u32 v%d, 1279, v%d" % (vEI, vEI))
    a("v_mov_b32_dpp v%d, v%d quad_perm:[0,0,0,0] %s" % (vT1, vEI, full))
    a("v_cmp_eq_u32 vcc, v%d, v%d" % (vEI, vT1))
    a("v_cndmask_b32 v%d, 0, v%d, vcc" % (vEP, vEN))
    a("v_lshlrev_b32 v%d, 17, v%d" % (vEI, vT1))
    a("v_cmp_ne_u32 vcc, 0, v%d" % vEP)
    a("s_and_b32 vcc_lo, vcc_lo, 0xeeeeeeee")
    a("s_and_b32 vcc_hi, vcc_hi, 0xeeeeeeee")
    a("v_mov_b32 v%d, %d" % (vT1, 4 << 5))
    a("v_cndmask_b32 v%d, 0, v%d, vcc" % (vT1, vT1))
    a("v_or_b32 v%d, v%d, v%d" % (vEP, vEP, vT1))
    a("v_or_b32_dpp v%d, v%d, v%d quad_perm:[1,0,3,2] %s" % (vEP, vEP, vEP, full))
    a("v_or_b32_dpp v%d, v%d, v%d quad_perm:[2,3,0,1] %s" % (vEP, vEP, vEP, full))
    a("s_min_u32 s3, s%d, 1" % sQZ)
    a("s_cmp_eq_u32 s3, 0")
    a("s_cbranch_scc1 L_qok")
    for b in range(4):
        lab = a.newlabel("qz")
        a("s_bitcmp0_b32 s%d, %d" % (sQZ, b))
        a("s_cbranch_scc1 %s" % lab)
        for k in range(4):
            a("v_mov_b32 v%d, 0" % (vQ + 4 * b + k))
        a.label(lab)
    a.label("L_qok")
    a("s_cmp_lt_u32 s%d, 4096" % sCE)
    a("s_cbranch_scc1 L_slowstart")
    a("s_mov_b32 exec_lo, 0x11111111")
    a("s_mov_b32 exec_hi, 0")
    a("ds_write_b64 v%d, %s offset:%d" % (vT0, vr(vEI, 2), L_LIST))
    a("s_mov_b64 exec, -1")
    for k in range(DM):
        a("v_readlane_b32 s%d, v%d, %d" % (sDESC + k, vEP, 4 * k))
    stamp(5)
    if lead:
        a("s_cmp_lt_u32 s%d, %d" % (sLK, lead))
        a("s_cbranch_scc0 L_loop")
        a("s_mov_b32 s%d, s%d" % (sCUR, sDESC))
        for k in range(D - 1):
            a("s_mov_b32 s%d, s%d" % (sDESC + k, sDESC + k + 1))
        a("v_readlane_b32 s%d, v%d, %d" % (sDESC + D - 1, vEP, 4 * D))
        a("s_branch L_comp")
    if stamps == 3:
        for j in range(8 * D):
            rem = 9 * D - 1 - (j // 8) * 9 - 1 - (j % 8) + (0)
            a("s_waitcnt vmcnt(%d)" % max(0, (8 * D - 1 - j) + (D - 1 - j // 8)))
            stamp(40 + j) if 40 + j < 60 else None
    if warm:
        pass

    def tail3_code():
        cb = 3 if tail3 == 16 else 2
        nrec = 32 >> (6 - cb)
        X = lambda b, i: vS + 4 * b + i
        for b in range(4):
            a("v_add_f32_dpp v%d, v%d, v%d row_ror:4 %s" % (vL + b, vL + b, vL + b, full))
        for b in range(4):
            a("ds_write_b128 v%d, %s offset:%d" % (vLW0, vr(vO + 8 * b, 4), L_OB + b * 2048))
            a("v_add_f32_dpp v%d, v%d, v%d row_ror:8 %s" % (X(b, 1), vL + b, vL + b, full))
            a("ds_write_b128 v%d, %s offset:%d" % (vLW0, vr(vO + 8 * b + 4, 4), L_OB + b * 2048 + 1024))
            a("v_mov_b32 v%d, v%d" % (X(b, 0), vM + b))
        a("s_mov_b32 exec_lo, 0x00010001")
        a("s_mov_b32 exec_hi, 0x00010001")
        for b in range(4):
            a("ds_write_b64 v%d, %s offset:%d" % (vLW1, vr(X(b, 0), 2), L_ML + b * 32))
        a("s_mov_b64 exec, -1")
        a("s_waitcnt lgkmcnt(0)")
        stamp(7)
        a("s_barrier")
        stamp(8)
        vML = vW + 2
        ORr = lambda i: vO + 8 * i
        vF, vLs, vOs = vS, vS + 1, vS + 4
        for w in range(4):
            a("ds_read_b64 %s, v%d offset:%d" % (vr(vML + 2 * w, 2), vLR1, L_ML + w * 128))
        for w in range(4):
            a("ds_read_b128 %s, v%d offset:%d" % (vr(ORr(w), 4), vLR0, L_OB + w * 8192))
            a("ds_read_b128 %s, v%d offset:%d" % (vr(ORr(w) + 4, 4), vLR0, L_OB + w * 8192 + 1024))
        a("s_waitcnt lgkmcnt(8)")
        Mr = lambda i: vML + 2 * i
        Lr = lambda i: vML + 2 * i + 1
        a("v_max3_f32 v%d, v%d, v%d, v%d" % (vF, Mr(0), Mr(1), Mr(2)))
        a("v_max_f32 v%d, v%d, v%d" % (vF, vF, Mr(3)))
        for i in range(4):
            a("v_sub_f32 v%d, v%d, v%d" % (Mr(i), Mr(i), vF))
        for i in range(4):
            a("v_exp_f32 v%d, v%d" % (Mr(i), Mr(i)))
        a("v_min_u32 v%d, -2, v%d" % (vF, vF))
        a("v_mul_f32 v%d, v%d, v%d" % (vLs, Lr(0), Mr(0)))
        for i in range(1, 4):
            a("v_fmac_f32 v%d, v%d, v%d" % (vLs, Lr(i), Mr(i)))
        for i in range(4):
            a("s_waitcnt lgkmcnt(%d)" % (6 - 2 * i))
            for k in range(4):
                o, r = vr(vOs + 2 * k, 2), vr(ORr(i) + 2 * k, 2)
                if i == 0:
                    a("v_pk_mul_f32 %s, %s, %s op_sel_hi:[1,0]" % (o, r, vr(Mr(i), 2)))
                else:
                    a("v_pk_fma_f32 %s, %s, %s, %s op_sel_hi:[1,0,1]" % (o, r, vr(Mr(i), 2), o))
            if i == 0:
                a("v_min_u32 v%d, -2, v%d" % (vLs, vLs))
                a("s_mov_b32 exec_lo, 0x00010001")
                a("s_mov_b32 exec_hi, 0x00010001")
                a("buffer_store_dwordx2 %s, v%d, s[%d:%d], s%d offen sc1" % (vr(vF, 2), vSTM, WSRD, WSRD + 3, sREGO))
                a("s_mov_b64 exec, -1")
        for k in range(4):
            a("v_min_u32 v%d, -2, v%d" % (vOs + k, vOs + k))
        a("buffer_store_dwordx4 %s, v%d, s[%d:%d], s%d offen sc1" % (vr(vOs, 4), vL16p, WSRD, WSRD + 3, sRECO))
        for k in range(4, 8):
            a("v_min_u32 v%d, -2, v%d" % (vOs + k, vOs + k))
        a("buffer_store_dwordx4 %s, v%d, s[%d:%d], s%d offen offset:1024 sc1" % (vr(vOs + 4, 4), vL16p, WSRD, WSRD + 3, sRECO))
        stamp(9)
        sHX, sIT = 52, 53
        a("s_waitcnt vmcnt(3)")
        a("v_readfirstlane_b32 s3, v%d" % vINI)
        a("v_readfirstlane_b32 s6, v%d" % vPK)
        stamp(10)
        a("s_cmp_lt_u32 s3, %d" % (32 - ncomb))
        a("s_cbranch_scc1 L_exit")
        a("s_sub_u32 s%d, s3, %d" % (sHX, 32 - ncomb))
        a("s_and_b32 s%d, s%d, %d" % (sHX, sHX, ncomb - 1))
        a("s_lshr_b32 s7, s%d, %d" % (sHX, cb))
        a("s_and_b32 s3, s%d, %d" % (sHX, (1 << cb) - 1))
        a("s_lshl_b32 s3, s3, %d" % (7 if cb == 3 else 6))
        a("s_lshl_b32 s4, s7, 10")
        a("s_add_u32 s4, s4, s3")
        a("s_lshr_b32 s5, s3, 8")
        a("s_lshl_b32 s5, s5, 8")
        a("s_add_u32 s5, s5, %d" % REG_O)
        a("s_lshl_b32 s7, s7, 3")
        a("s_add_u32 s7, s7, s3")
        a("s_mov_b32 s%d, 0" % sIT)
        a("s_cmp_eq_u32 s6, 32")
        a("s_cbranch_scc1 L_comb")
        a.label("L_spinC")
        a("global_load_dword v%d, v%d, %s offset:4 sc1" % (vPK, vLA, sp(sDBG)))
        a("s_waitcnt vmcnt(0)")
        a("v_readfirstlane_b32 s6, v%d" % vPK)
        a("s_cmp_lt_u32 s6, 32")
        a("s_cbranch_scc1 L_spinC")
        nld = nrec + nrec // 2
        def regs(sv):
            base = vW + 24 * sv if sv < 2 else vO + 24 * (sv - 2)
            ML = base
            O = lambda i: base + 8 + 4 * i
            return ML, O
        def loads(sv):
            ML, O = regs(sv)
            for t in range(nrec // 2):
                a("buffer_load_dwordx4 %s, v%d, s[%d:%d], s5 offen offset:%d sc1" % (vr(ML + 4 * t, 4), vCMa, WSRD, WSRD + 3, 16 * t))
            for i in range(nrec):
                a("buffer_load_dwordx4 %s, v%d, s[%d:%d], s4 offen offset:%d sc1" % (vr(O(i), 4), vCD if i < 2 else vCD2, WSRD, WSRD + 3, 2048 * (i & 1)))
        cT = [vS + i for i in range(8)]
        def check(sv):
            ML, O = regs(sv)
            rs = [ML + i for i in range(2 * nrec)] + [O(i) + k for i in range(nrec) for k in range(4)]
            lvl = rs
            while len(lvl) > 1:
                nxt = []
                i = 0
                t = 0
                while i < len(lvl):
                    if len(lvl) - i >= 3:
                        a("v_max3_u32 v%d, v%d, v%d, v%d" % (cT[t], lvl[i], lvl[i + 1], lvl[i + 2])); nxt.append(cT[t]); t += 1; i += 3
                    elif len(lvl) - i == 2:
                        a("v_max_u32 v%d, v%d, v%d" % (cT[t], lvl[i], lvl[i + 1])); nxt.append(cT[t]); t += 1; i += 2
                    else:
                        nxt.append(lvl[i]); i += 1
                lvl = nxt
            a("v_cmp_eq_u32 vcc, -1, v%d" % lvl[0])
        def allred(r, t, op):
            if cb == 2:
                a("%s_dpp v%d, v%d, v%d row_ror:4 %s" % (op, r, r, r, full))
            a("%s_dpp v%d, v%d, v%d row_ror:8 %s" % (op, r, r, r, full))
            a("v_mov_b32 v%d, v%d" % (t, r))
            a("v_permlane16_swap_b32 v%d, v%d" % (r, t))
            a("%s v%d, v%d, v%d" % (op, r, r, t))
            a("v_mov_b32 v%d, v%d" % (t, r))
            a("v_permlane32_swap_b32 v%d, v%d" % (r, t))
            a("%s v%d, v%d, v%d" % (op, r, r, t))
        def use(sv):
            ML, O = regs(sv)
            cM, cT0, cL, cT1 = vS + 8, vS + 9, vS + 10, vS + 11
            cW = lambda i: vA + 2 * i
            cAcc = vS + 12
            if nrec == 4:
                a("v_max3_f32 v%d, v%d, v%d, v%d" % (cM, ML, ML + 2, ML + 4))
                a("v_max_f32 v%d, v%d, v%d" % (cM, cM, ML + 6))
            else:
                a("v_max_f32 v%d, v%d, v%d" % (cM, ML, ML + 2))
            allred(cM, cT0, "v_max_f32")
            for i in range(nrec):
                a("v_sub_f32 v%d, v%d, v%d" % (cW(i), ML + 2 * i, cM))
            for i in range(nrec):
                a("v_exp_f32 v%d, v%d" % (cW(i), cW(i)))
            a("v_mul_f32 v%d, v%d, v%d" % (cL, ML + 1, cW(0)))
            for i in range(1, nrec):
                a("v_fmac_f32 v%d, v%d, v%d" % (cL, ML + 2 * i + 1, cW(i)))
            for i in range(nrec):
                for k in range(2):
                    o, r = vr(cAcc + 2 * k, 2), vr(O(i) + 2 * k, 2)
                    if i == 0:
                        a("v_pk_mul_f32 %s, %s, %s op_sel_hi:[1,0]" % (o, r, vr(cW(i), 2)))
                    else:
                        a("v_pk_fma_f32 %s, %s, %s, %s op_sel_hi:[1,0,1]" % (o, r, vr(cW(i), 2), o))
            a("v_permlane32_swap_b32 v%d, v%d" % (cAcc, cAcc + 1))
            a("v_permlane32_swap_b32 v%d, v%d" % (cAcc + 2, cAcc + 3))
            if cb == 2:
                a("v_add_f32_dpp v%d, v%d, v%d row_ror:4 %s" % (cL, cL, cL, full))
            a("v_add_f32 v%d, v%d, v%d" % (cAcc, cAcc, cAcc + 1))
            a("v_add_f32 v%d, v%d, v%d" % (cAcc + 2, cAcc + 2, cAcc + 3))
            a("v_add_f32_dpp v%d, v%d, v%d row_ror:8 %s" % (cL, cL, cL, full))
            a("v_mov_b32 v%d, v%d" % (cT1, cL))
            a("v_permlane16_swap_b32 v%d, v%d" % (cAcc, cAcc + 2))
            a("v_permlane16_swap_b32 v%d, v%d" % (cL, cT1))
            a("v_add_f32 v%d, v%d, v%d" % (cAcc, cAcc, cAcc + 2))
            a("v_add_f32 v%d, v%d, v%d" % (cL, cL, cT1))
            a("v_mov_b32 v%d, v%d" % (cT1, cL))
            if cb == 2:
                a("v_add_f32_dpp v%d, v%d, v%d row_ror:4 %s" % (cAcc, cAcc, cAcc, full))
            a("v_permlane32_swap_b32 v%d, v%d" % (cL, cT1))
            a("v_add_f32_dpp v%d, v%d, v%d row_ror:8 %s" % (cAcc, cAcc, cAcc, full))
            a("v_add_f32 v%d, v%d, v%d" % (cL, cL, cT1))
            a("v_rcp_f32 v%d, v%d" % (cL, cL))
            a("v_add_u32 v%d, s7, v%d" % (cT0, vOAp))
            a("v_mul_f32 v%d, v%d, v%d" % (cAcc, cAcc, cL))
            a("v_cvt_pk_bf16_f32 v%d, v%d, v%d" % (cAcc, cAcc, cAcc))
            m = 0x00ff00ff if cb == 3 else 0x000f000f
            a("s_mov_b32 exec_lo, 0x%08x" % m)
            a("s_mov_b32 exec_hi, 0x%08x" % m)
            a("global_store_short v%d, v%d, %s" % (cT0, cAcc, sp(sOUT)))
            a("s_mov_b64 exec, -1")
        a.label("L_comb")
        if psets == 1:
            a.label("L_poll")
            loads(0)
            a("s_mov_b64 exec, -1")
            a("s_waitcnt vmcnt(0)")
            if stamps == 4:
                a("s_min_u32 s3, s%d, 40" % sIT)
                a("s_add_u32 m0, s3, 16")
                stamp("m0")
            check(0)
            a("s_cbranch_vccz L_comb_use")
            a("s_add_u32 s%d, s%d, 1" % (sIT, sIT))
            a("s_cmp_gt_u32 s%d, 0x400000" % sIT)
            a("s_cbranch_scc1 L_comb_use")
            if pslp:
                a("s_sleep %d" % pslp)
            a("s_mov_b64 exec, vcc")
            a("s_branch L_poll")
            a.label("L_comb_use")
            use(0)
        else:
            assert psets <= 3
            for sv in range(psets):
                loads(sv)
                if sv + 1 < psets and pslp:
                    a("s_sleep %d" % pslp)
            a.label("L_poll")
            for sv in range(psets):
                a("s_waitcnt vmcnt(%d)" % (nld * (psets - 1)))
                check(sv)
                a("s_cbranch_vccz L_use%d" % sv)
                a("s_mov_b64 exec, vcc")
                loads(sv)
                a("s_mov_b64 exec, -1")
            a("s_add_u32 s%d, s%d, 1" % (sIT, sIT))
            a("s_cmp_le_u32 s%d, 0x400000" % sIT)
            a("s_cbranch_scc1 L_poll")
            for sv in range(psets):
                a.label("L_use%d" % sv)
                use(sv)
                a("s_waitcnt vmcnt(0)")
                if sv + 1 < psets:
                    a("s_branch L_exit")

    a.label("L_loop")
    for k in range(1, D):
        a("s_cmp_eq_u32 s%d, %d" % (sSTAGE, k))
        a("s_cbranch_scc1 L_st%d" % k)
    if deep:
        a("s_cmp_ge_u32 s%d, %d" % (sSTAGE, D))
        a("s_cbranch_scc1 L_deepdisp")
    def stage_body(k, D, sid0, fall):
        LEAD = D - 1
        WAITN = 8 * (D - 1) + (D - 2)
        tg = sid0 + k
        kc = (k + D - LEAD) % D
        a.label("L_st%d" % tg)
        a("s_cmp_eq_u32 s%d, 0" % (sDESC + k))
        a("s_cbranch_scc1 L_done")
        a("s_add_u32 s3, s%d, %d" % (sN, D))
        a("s_lshl_b32 s%d, s3, 5" % sP)
        a("s_add_u32 s%d, s%d, s%d" % (sP, sP, sSPLIT))
        a("s_waitcnt vmcnt(%d)" % WAITN)
        if stamps == 2:
            a("s_min_u32 s4, s%d, 43" % sN)
            a("s_add_u32 m0, s4, 16")
            stamp("m0")
        a("v_readfirstlane_b32 s%d, v%d" % (sCL, vCLM + kc))
        a("s_add_u32 s4, s%d, s%d" % (sCL, sDYN0))
        a("s_cmp_lt_u32 s3, s%d" % sSS)
        a("s_cselect_b32 s%d, s%d, s4" % (sP, sP))
        a("s_cmp_ge_u32 s%d, s%d" % (sN, sSTOPN))
        a("s_cselect_b32 s%d, -1, s%d" % (sP, sP))
        a("s_cmp_lt_u32 s%d, s%d" % (sP, sU))
        a("s_cselect_b32 s4, s%d, 0" % sP)
        a("s_cselect_b32 s%d, s%d, 1" % (sEXH, sEXH))
        a("s_cselect_b32 s%d, 0x%x, 0" % (KS + 2, CACHE_BYTES))
        a("s_add_u32 s5, s%d, %d" % (sN, LEAD))
        a("s_cmp_lg_u32 s%d, 0" % sEXH)
        a("s_cselect_b32 s5, s5, -1")
        a("s_min_u32 s%d, s%d, s5" % (sSTOPN, sSTOPN))
        a("s_mov_b32 s%d, s%d" % (VS + 2, KS + 2))
        a("s_lshl_b32 s4, s4, 3")
        a("v_mov_b32 v%d, s4" % vT0)
        a("ds_read_b64 %s, v%d offset:%d" % (vr(vT0, 2), vT0, L_LIST))
        for i in range(16):
            a("v_mov_b64 %s, %s" % (vr(vW + 2 * i, 2), vr(vR + 32 * k + 2 * i, 2)))
        ldum, lgo, lcl, lno = "L_dum%d" % tg, "L_iss%d" % tg, "L_cl%d" % tg, "L_nocl%d" % tg
        a("s_cmp_ge_u32 s%d, s%d" % (sN, sNC))
        a("s_cbranch_scc0 %s" % lno)
        a("s_cmp_lg_u32 s%d, 0" % sEXH)
        a("s_cbranch_scc1 %s" % ldum)
        a("s_cmp_lg_u32 s%d, 0" % sFOK)
        a("s_cbranch_scc1 %s" % lcl)
        a("s_lshr_b32 s4, s%d, 16" % sCL)
        a("s_cmp_lg_u32 s4, 0")
        a("s_cbranch_scc0 L_elect")
        a("s_mov_b32 s%d, 1" % sFOK)
        a.label(lcl)
        a("s_mov_b64 exec, 1")
        a("global_atomic_add v%d, v%d, v%d, %s sc0" % (vCLM + k, vCA, vONE, sp(sWS)))
        a("s_mov_b64 exec, -1")
        a("s_branch %s" % lgo)
        a.label(lno)
        a("s_cmp_eq_u32 s%d, s%d" % (sN, sNF))
        a("s_cbranch_scc0 %s" % ldum)
        a("s_cmp_eq_u32 s%d, 0x1000" % sU)
        a("s_cbranch_scc1 L_getconst")
        a("s_mov_b64 exec, 1")
        a("global_load_dword v%d, v%d, %s sc1" % (vCLM + k, vLA, sp(sDBG)))
        a("s_mov_b64 exec, -1")
        a("s_branch %s" % lgo)
        a.label(ldum)
        dummyC(k)
        a.label(lgo)
        a("s_waitcnt lgkmcnt(0)")
        a("v_readfirstlane_b32 s%d, v%d" % (sOFF, vT0))
        a("v_readfirstlane_b32 s%d, v%d" % (sNEW, vT1))
        a("s_cmp_lg_u32 s%d, 0" % (KS + 2))
        a("s_cselect_b32 s%d, s%d, 0" % (sNEW, sNEW))
        a("s_cselect_b32 s%d, s%d, 0" % (sOFF, sOFF))
        issue(k)
        a("s_mov_b32 s%d, s%d" % (sCUR, sDESC + k))
        a("s_mov_b32 s%d, s%d" % (sDESC + k, sNEW))
        a("s_mov_b32 s%d, %d" % (sSTAGE, sid0 + (k + 1) % D))
        if not fall:
            a("s_branch L_comp")
    for k in range(D):
        stage_body(k, D, 0, k == D - 1)
    a.label("L_comp")
    if stamps == 1:
        a("s_min_u32 s3, s%d, 47" % sN)
        a("s_add_u32 m0, s3, 16")
        stamp("m0")
    a("s_bfe_u32 s%d, s%d, 0x30005" % (sTYPE, sCUR))
    for b in range(4):
        a("s_bfe_u32 s%d, s%d, 0x%x" % (sNV + b, sCUR, (5 << 16) | (8 * b)))
    a("s_cmp_eq_u32 s%d, 4" % sTYPE)
    a("s_cbranch_scc1 L_c4")
    for b in range(1, 4):
        a("s_cmp_eq_u32 s%d, %d" % (sTYPE, b))
        a("s_cbranch_scc1 L_c%d" % b)

    K = lambda i, k: vW + 4 * i + k
    V = lambda i, k: vW + 16 + 4 * i + k

    def compute(qs):
        nq = len(qs)
        S = lambda j, i: vS + 4 * j + i
        A = lambda j: vA + 2 * j
        P = lambda j: vA + 2 * j + 1
        PB = lambda j: vPB + 2 * j
        T = lambda j: vPB + 2 * j + 1
        msk = lambda j: sp(52 + 2 * j)
        for j, b in enumerate(qs):
            a("v_cmp_gt_u32 %s, s%d, v%d" % (msk(j), sNV + b, vTOK))
        for k in range(4):
            for j, b in enumerate(qs):
                for i in range(4):
                    if k == 0:
                        a("v_dot2_f32_bf16 v%d, v%d, v%d, 0" % (S(j, i), K(i, k), vQ + 4 * b + k))
                    else:
                        a("v_dot2c_f32_bf16 v%d, v%d, v%d" % (S(j, i), K(i, k), vQ + 4 * b + k))

        def unpack(i, dst):
            for k in range(4):
                a("v_lshlrev_b32 v%d, 16, v%d" % (dst + 2 * k, V(i, k)))
                a("v_and_b32 v%d, s%d, v%d" % (dst + 2 * k + 1, sHI, V(i, k)))
        unpack(0, vU)
        for j in range(nq):
            a("v_add_f32_dpp v%d, v%d, v%d row_ror:8 row_mask:0xf bank_mask:0x3" % (S(j, 0), S(j, 0), S(j, 0)))
            a("v_add_f32_dpp v%d, v%d, v%d row_ror:8 row_mask:0xf bank_mask:0x3" % (S(j, 1), S(j, 1), S(j, 1)))
            a("v_add_f32_dpp v%d, v%d, v%d row_ror:8 row_mask:0xf bank_mask:0xc" % (S(j, 0), S(j, 2), S(j, 2)))
            a("v_add_f32_dpp v%d, v%d, v%d row_ror:8 row_mask:0xf bank_mask:0xc" % (S(j, 1), S(j, 3), S(j, 3)))
        unpack(1, vU + 8)
        for j in range(nq):
            a("v_add_f32_dpp v%d, v%d, v%d row_half_mirror row_mask:0xf bank_mask:0x5" % (S(j, 0), S(j, 0), S(j, 0)))
        for j in range(nq):
            a("v_add_f32_dpp v%d, v%d, v%d row_half_mirror row_mask:0xf bank_mask:0xa" % (S(j, 0), S(j, 1), S(j, 1)))
        for j in range(nq):
            a("v_add_f32_dpp v%d, v%d, v%d quad_perm:[1,0,3,2] %s" % (S(j, 0), S(j, 0), S(j, 0), full))
        for j in range(nq):
            a("v_add_f32_dpp v%d, v%d, v%d quad_perm:[2,3,0,1] %s" % (S(j, 0), S(j, 0), S(j, 0), full))
        for j in range(nq):
            a("v_mul_f32 v%d, s%d, v%d" % (S(j, 0), sC, S(j, 0)))
        for j in range(nq):
            a("v_cndmask_b32 v%d, v%d, v%d, %s" % (S(j, 0), vNEG, S(j, 0), msk(j)))
        for j, b in enumerate(qs):
            a("v_max_f32 v%d, v%d, v%d" % (T(j), S(j, 0), vM + b))
        for j in range(nq):
            a("v_max_f32_dpp v%d, v%d, v%d row_ror:4 %s" % (T(j), T(j), T(j), full))
        for j in range(nq):
            a("v_max_f32_dpp v%d, v%d, v%d row_ror:8 %s" % (T(j), T(j), T(j), full))
        for j, b in enumerate(qs):
            a("v_sub_f32 v%d, v%d, v%d" % (A(j), vM + b, T(j)))
            a("v_sub_f32 v%d, v%d, v%d" % (P(j), S(j, 0), T(j)))
        for j, b in enumerate(qs):
            a("v_exp_f32 v%d, v%d" % (A(j), A(j)))
            a("v_exp_f32 v%d, v%d" % (P(j), P(j)))
        for j, b in enumerate(qs):
            a("v_mov_b32 v%d, v%d" % (vM + b, T(j)))
        for j, b in enumerate(qs):
            a("v_fma_f32 v%d, v%d, v%d, v%d" % (vL + b, vL + b, A(j), P(j)))
        for j, b in enumerate(qs):
            for k in range(4):
                o = vO + 8 * b + 2 * k
                a("v_pk_mul_f32 %s, %s, %s op_sel_hi:[1,0]" % (vr(o, 2), vr(o, 2), vr(A(j), 2)))
        for i in range(4):
            u = vU + 8 * (i & 1)
            for j in range(nq):
                a("v_mov_b32_dpp v%d, v%d row_newbcast:%d %s" % (PB(j), P(j), 4 * i, full))
            for j, b in enumerate(qs):
                for k in range(4):
                    o = vO + 8 * b + 2 * k
                    a("v_pk_fma_f32 %s, %s, %s, %s op_sel_hi:[1,0,1]" % (vr(o, 2), vr(u + 2 * k, 2), vr(PB(j), 2), vr(o, 2)))
            if i + 2 < 4:
                unpack(i + 2, u)

    for b in range(4):
        a.label("L_c%d" % b)
        compute([b])
        a("s_branch L_next")
    a.label("L_c4")
    compute([0, 1, 2, 3])
    a.label("L_next")
    a("s_add_u32 s%d, s%d, 1" % (sN, sN))
    a("s_branch L_loop")

    a.label("L_done")
    stamp(6)
    if hst == 1:
        a("s_memrealtime s[98:99]")
    a("s_cmp_lg_u32 s%d, 0" % sFOK)
    a("s_cbranch_scc0 L_elect")
    if warm:
        a.raw("    ; WARM_BEGIN")
    a("s_mov_b64 exec, 1")
    a("global_atomic_add v%d, v%d, v%d, %s offset:1024 sc0" % (vINI, vCA, vONE, sp(sWS)))
    if tail2:
        a("global_load_dword v%d, v%d, %s offset:4 sc1" % (vPK, vLA, sp(sDBG)))
    if tail3 and tlbw:
        a("buffer_load_dword v%d, v%d, s[%d:%d], s%d offen sc1" % (vA, vL16p, WSRD, WSRD + 3, sRECO))
        a("global_load_dword v%d, v%d, %s" % (vA + 1, vOAp, sp(sOUT)))
    a("s_mov_b64 exec, -1")
    if not tail3:
        X = lambda b, i: vS + 4 * b + i
        for b in range(4):
            a("v_add_f32_dpp v%d, v%d, v%d row_ror:4 %s" % (vL + b, vL + b, vL + b, full))
        a("v_lshlrev_b32 v%d, 4, v%d" % (vW, vLANE))
        a("s_lshl_b32 s3, s%d, 13" % sW)
        a("v_add_u32 v%d, s3, v%d" % (vT0, vW))
        for b in range(4):
            a("v_add_f32_dpp v%d, v%d, v%d row_ror:8 %s" % (X(b, 1), vL + b, vL + b, full))
        for b in range(4):
            a("ds_write_b128 v%d, %s offset:%d" % (vT0, vr(vO + 8 * b, 4), L_OB + b * 2048))
            a("ds_write_b128 v%d, %s offset:%d" % (vT0, vr(vO + 8 * b + 4, 4), L_OB + b * 2048 + 1024))
        for b in range(4):
            a("v_mov_b32 v%d, v%d" % (X(b, 0), vM + b))
        a("v_lshrrev_b32 v%d, 4, v%d" % (vW + 1, vLANE))
        a("v_lshlrev_b32 v%d, 3, v%d" % (vW + 1, vW + 1))
        a("s_lshl_b32 s3, s%d, 7" % sW)
        a("v_add_u32 v%d, s3, v%d" % (vT1, vW + 1))
        a("s_mov_b32 exec_lo, 0x00010001")
        a("s_mov_b32 exec_hi, 0x00010001")
        for b in range(4):
            a("ds_write_b64 v%d, %s offset:%d" % (vT1, vr(X(b, 0), 2), L_ML + b * 32))
        a("s_mov_b64 exec, -1")
        a("s_waitcnt lgkmcnt(0)")
        stamp(7)
        a("s_barrier")
        stamp(8)
        if hst == 2:
            a("s_memrealtime s[98:99]")

        vA16, vR8 = vW, vW + 1
        vML = vW + 2
        ORr = lambda i: vO + 8 * i
        vF, vLs, vOs = vS, vS + 1, vS + 4
        a("s_lshl_b32 s3, s%d, 11" % sW)
        a("v_add_u32 v%d, s3, v%d" % (vT0, vA16))
        a("s_lshl_b32 s3, s%d, 5" % sW)
        a("v_add_u32 v%d, s3, v%d" % (vT1, vR8))
        for w in range(4):
            a("ds_read_b64 %s, v%d offset:%d" % (vr(vML + 2 * w, 2), vT1, L_ML + w * 128))
        for w in range(4):
            a("ds_read_b128 %s, v%d offset:%d" % (vr(ORr(w), 4), vT0, L_OB + w * 8192))
            a("ds_read_b128 %s, v%d offset:%d" % (vr(ORr(w) + 4, 4), vT0, L_OB + w * 8192 + 1024))
        a("s_lshl_b32 s3, s%d, 2" % sHG)
        a("s_add_u32 s3, s3, s%d" % sW)
        a("s_mul_i32 s3, s3, %d" % REGION)
        a("s_add_u32 s%d, s%d, s3" % (WSRD, sWS))
        a("s_addc_u32 s%d, s%d, 0" % (WSRD + 1, sWS + 1))
        a("s_and_b32 s%d, s%d, 0xffff" % (WSRD + 1, WSRD + 1))
        a("s_mov_b32 s%d, %d" % (WSRD + 2, REGION))
        a("s_mov_b32 s%d, 0x00020000" % (WSRD + 3))
        a("s_lshl_b32 s%d, s%d, 11" % (sOFF, sSPLIT))
        a("v_lshlrev_b32 v%d, 5, v%d" % (vA, vR8))
        a("s_lshl_b32 s3, s%d, 3" % sSPLIT)
        a("v_add_u32 v%d, s3, v%d" % (vA, vA))
        a("s_mov_b32 s4, %d" % REG_O)
        a("s_waitcnt lgkmcnt(8)")
        Mr = lambda i: vML + 2 * i
        Lr = lambda i: vML + 2 * i + 1
        a("v_max3_f32 v%d, v%d, v%d, v%d" % (vF, Mr(0), Mr(1), Mr(2)))
        a("v_max_f32 v%d, v%d, v%d" % (vF, vF, Mr(3)))
        for i in range(4):
            a("v_sub_f32 v%d, v%d, v%d" % (Mr(i), Mr(i), vF))
        for i in range(4):
            a("v_exp_f32 v%d, v%d" % (Mr(i), Mr(i)))
        a("v_mul_f32 v%d, v%d, v%d" % (vLs, Lr(0), Mr(0)))
        for i in range(1, 4):
            a("v_fmac_f32 v%d, v%d, v%d" % (vLs, Lr(i), Mr(i)))
        a("v_min_u32 v%d, -2, v%d" % (vF, vF))
        a("v_min_u32 v%d, -2, v%d" % (vLs, vLs))
        a("s_mov_b32 exec_lo, 0x00010001")
        a("s_mov_b32 exec_hi, 0x00010001")
        a("buffer_store_dwordx2 %s, v%d, s[%d:%d], s4 offen sc1" % (vr(vF, 2), vA, WSRD, WSRD + 3))
        a("s_mov_b64 exec, -1")
        a("s_waitcnt lgkmcnt(0)")
        for k in range(8):
            a("v_mul_f32 v%d, v%d, v%d" % (vOs + k, ORr(0) + k, Mr(0)))
        for i in range(1, 4):
            for k in range(8):
                a("v_fmac_f32 v%d, v%d, v%d" % (vOs + k, ORr(i) + k, Mr(i)))
        for k in range(8):
            a("v_min_u32 v%d, -2, v%d" % (vOs + k, vOs + k))
        a("buffer_store_dwordx4 %s, v%d, s[%d:%d], s%d offen sc1" % (vr(vOs, 4), vA16, WSRD, WSRD + 3, sOFF))
        a("buffer_store_dwordx4 %s, v%d, s[%d:%d], s%d offen offset:1024 sc1" % (vr(vOs + 4, 4), vA16, WSRD, WSRD + 3, sOFF))
        stamp(9)
        vAR, sAR, aoff = vCA, sWS, 1024
        vCA0, vCM = vA, vA + 1
        a("v_lshrrev_b32 v%d, 4, v%d" % (vCA0, vLANE))
        a("v_lshlrev_b32 v%d, 10, v%d" % (vCA0, vCA0))
        a("v_and_b32 v%d, 15, v%d" % (vCM, vLANE))
        a("v_lshl_add_u32 v%d, v%d, 4, v%d" % (vCA0, vCM, vCA0))
        a("v_lshrrev_b32 v%d, 5, v%d" % (vA + 2, vLANE))
        a("v_lshl_add_u32 v%d, v%d, 1, v%d" % (vCM, vCM, vA + 2))
        a("v_lshlrev_b32 v%d, 3, v%d" % (vCM, vCM))
        sHX = 52
        sIT = 53
        a("s_waitcnt vmcnt(3)")
        a("v_readfirstlane_b32 s3, v%d" % vINI)
        stamp(10)
        a("s_cmp_lt_u32 s3, %d" % (32 - ncomb))
        a("s_cbranch_scc1 L_exit")
        a("s_sub_u32 s%d, s3, %d" % (sHX, 32 - ncomb))
        a("s_mov_b32 s%d, 0" % sIT)
        if tail2:
            a("v_readfirstlane_b32 s3, v%d" % vPK)
            a("s_cmp_eq_u32 s3, 32")
            a("s_cbranch_scc1 L_comb")
            a.label("L_spinC")
            a("global_load_dword v%d, v%d, %s offset:4 sc1" % (vPK, vLA, sp(sDBG)))
            a("s_waitcnt vmcnt(0)")
            a("v_readfirstlane_b32 s3, v%d" % vPK)
            a("s_cmp_lt_u32 s3, 32")
            a("s_cbranch_scc1 L_spinC")
        else:
            a("s_cmp_eq_u32 s3, 31")
            a("s_cbranch_scc1 L_comb")
            a.label("L_spinC")
            a("global_load_dword v%d, v%d, %s offset:%d sc1" % (vPK, vAR, sp(sAR), aoff))
            a("s_waitcnt vmcnt(0)")
            a("v_readfirstlane_b32 s3, v%d" % vPK)
            a("s_cmp_lt_u32 s3, 32")
            a("s_cbranch_scc1 L_spinC")
        a.label("L_comb")
        assert ncomb == 4
        cML = vS
        cO = lambda i: vW + 4 * i if i < 12 else vO + 4 * (i - 12)
        a("s_lshl_b32 s4, s%d, 8" % sHX)
        a("s_add_u32 s5, s4, %d" % REG_O)
        a("buffer_load_dwordx2 %s, v%d, s[%d:%d], s5 offen sc1" % (vr(cML, 2), vCM, WSRD, WSRD + 3))
        for i in range(16):
            a("buffer_load_dwordx4 %s, v%d, s[%d:%d], s4 offen sc1" % (vr(cO(i), 4), vCA0, WSRD, WSRD + 3))
            if i < 15:
                a("s_add_u32 s4, s4, 4096")
        a.label("L_comb_use")
        a("s_lshl_b32 s3, s%d, 2" % sHG)
        a("s_add_u32 s3, s3, s%d" % sHX)
        a("s_lshl_b32 s3, s3, 8")
        a("s_lshl_b32 s4, s%d, 13" % sW)
        a("s_add_u32 s3, s3, s4")
        vOA = vA + 3
        a("v_and_b32 v%d, 15, v%d" % (vOA, vLANE))
        a("v_lshlrev_b32 v%d, 4, v%d" % (vOA, vOA))
        a("v_bfe_u32 v%d, v%d, 4, 1" % (vA + 4, vLANE))
        a("v_lshl_add_u32 v%d, v%d, 3, v%d" % (vOA, vA + 4, vOA))
        a("v_add_u32 v%d, s3, v%d" % (vOA, vOA))
        cM, cW, cL, cT = vS + 2, vS + 3, vS + 4, vS + 5
        cAcc = vS + 8
        cPB = vPB
        cV = vS + 6
        a("s_waitcnt vmcnt(16)")
        a("v_max_u32 v%d, v%d, v%d" % (cV, cML, cML + 1))
        a("v_max_f32_dpp v%d, v%d, v%d row_ror:1 %s" % (cM, cML, cML, full))
        for r in (2, 4, 8):
            a("v_max_f32_dpp v%d, v%d, v%d row_ror:%d %s" % (cM, cM, cM, r, full))
        a("v_mov_b32 v%d, v%d" % (cT, cM))
        a("v_permlane32_swap_b32 v%d, v%d" % (cM, cT))
        a("v_max_f32 v%d, v%d, v%d" % (cM, cM, cT))
        a("v_sub_f32 v%d, v%d, v%d" % (cW, cML, cM))
        a("v_exp_f32 v%d, v%d" % (cW, cW))
        a("v_mul_f32 v%d, v%d, v%d" % (cL, cML + 1, cW))
        for r in (1, 2, 4, 8):
            a("v_add_f32_dpp v%d, v%d, v%d row_ror:%d %s" % (cL, cL, cL, r, full))
        a("v_mov_b32 v%d, v%d" % (cT, cL))
        a("v_permlane32_swap_b32 v%d, v%d" % (cL, cT))
        a("v_add_f32 v%d, v%d, v%d" % (cL, cL, cT))
        a("v_rcp_f32 v%d, v%d" % (cL, cL))
        for i in range(16):
            pb = cPB + 2 * (i & 1)
            a("v_mov_b32_dpp v%d, v%d row_newbcast:%d %s" % (pb, cW, i, full))
            a("s_waitcnt vmcnt(%d)" % (15 - i))
            a("v_max3_u32 v%d, v%d, v%d, v%d" % (cV, cV, cO(i), cO(i) + 1))
            a("v_max3_u32 v%d, v%d, v%d, v%d" % (cV, cV, cO(i) + 2, cO(i) + 3))
            for k in range(2):
                if i == 0:
                    a("v_pk_mul_f32 %s, %s, %s op_sel_hi:[1,0]" % (vr(cAcc + 2 * k, 2), vr(cO(i) + 2 * k, 2), vr(pb, 2)))
                else:
                    a("v_pk_fma_f32 %s, %s, %s, %s op_sel_hi:[1,0,1]" % (vr(cAcc + 2 * k, 2), vr(cO(i) + 2 * k, 2), vr(pb, 2), vr(cAcc + 2 * k, 2)))
        a("v_cmp_eq_u32 vcc, -1, v%d" % cV)
        if tail2 >= 2:
            a("s_cbranch_vccnz L_sel")
        else:
            a("s_add_u32 s%d, s%d, 1" % (sIT, sIT))
            a("s_cmp_gt_u32 s%d, 0x100000" % sIT)
            a("s_cbranch_scc1 L_combfin")
            a("s_cbranch_vccnz L_comb")
        a.label("L_combfin")
        for k in range(4):
            a("v_mov_b32 v%d, v%d" % (vS + 12 + k, cAcc + k))
        for k in range(4):
            a("v_permlane32_swap_b32 v%d, v%d" % (cAcc + k, vS + 12 + k))
        for k in range(4):
            a("v_add_f32 v%d, v%d, v%d" % (cAcc + k, cAcc + k, vS + 12 + k))
        for k in range(4):
            a("v_mul_f32 v%d, v%d, v%d" % (cAcc + k, cAcc + k, cL))
        a("v_cvt_pk_bf16_f32 v%d, v%d, v%d" % (cAcc, cAcc, cAcc + 1))
        a("v_cvt_pk_bf16_f32 v%d, v%d, v%d" % (cAcc + 1, cAcc + 2, cAcc + 3))
        a("s_mov_b32 exec_lo, -1")
        a("s_mov_b32 exec_hi, 0")
        a("global_store_dwordx2 v%d, %s, %s" % (vOA, vr(cAcc, 2), sp(sOUT)))
        a("s_mov_b64 exec, -1")
    else:
        tail3_code()
    if warm:
        a.raw("    ; WARM_END")
    if hst == 2:
        a("s_memrealtime s[4:5]")
        a("s_waitcnt lgkmcnt(0)")
        a("v_mov_b32 v%d, s4" % vT0)
        a("v_mov_b32 v%d, 16" % vT1)
        a("s_mov_b64 exec, 1")
        a("global_atomic_umax v%d, v%d, %s" % (vT1, vT0, sp(sDBG)))
    a.label("L_exit")
    if hst == 2:
        a("s_cmp_eq_u32 s%d, 0" % sW)
        a("s_cbranch_scc0 L_exit2")
        a("s_waitcnt lgkmcnt(0)")
        a("v_mov_b32 v%d, s98" % vT0)
        a("v_mov_b32 v%d, 12" % vT1)
        a("s_mov_b64 exec, 1")
        a("global_atomic_umax v%d, v%d, %s" % (vT1, vT0, sp(sDBG)))
    if hst == 1:
        a("s_memrealtime s[4:5]")
        a("s_not_b32 s3, s100")
        a("v_mov_b32 v%d, s3" % vT0)
        a("s_waitcnt lgkmcnt(0)")
        a("v_writelane_b32 v%d, s98, 1" % vT0)
        a("v_writelane_b32 v%d, s4, 2" % vT0)
        a("v_lshlrev_b32 v%d, 2, v%d" % (vT1, vLANE))
        a("s_mov_b64 exec, 7")
        a("global_atomic_umax v%d, v%d, %s offset:8" % (vT1, vT0, sp(sDBG)))

    def stamps_out(slot_expr):
        stamp(11)
        a("v_writelane_b32 v%d, s%d, 12" % (vST, sN))
        a("s_getreg_b32 s3, hwreg(HW_REG_XCC_ID)")
        a("v_writelane_b32 v%d, s3, 14" % vST)
        a("s_getreg_b32 s3, hwreg(HW_REG_HW_ID)")
        a("v_writelane_b32 v%d, s3, 15" % vST)
        slot_expr()
        a("s_lshl_b32 s3, s3, 8")
        a("s_add_u32 s3, s3, 0x8000000")
        a("v_lshlrev_b32 v%d, 2, v%d" % (vT0, vLANE))
        a("v_add_u32 v%d, s3, v%d" % (vT0, vT0))
        a("global_store_dword v%d, v%d, %s" % (vT0, vST, sp(sWS)))
    if stamps:
        def sl():
            a("s_lshl_b32 s3, s2, 2")
            a("s_add_u32 s3, s3, s%d" % sW)
        stamps_out(sl)
    a.label("L_exit2")
    a("s_endpgm")

    if tail2 >= 2:
        sMASK = 54
        def chk(i):
            if i < 16:
                a("v_max3_u32 v%d, v%d, v%d, v%d" % (cT, cO(i), cO(i) + 1, cO(i) + 2))
                a("v_max_u32 v%d, v%d, v%d" % (cT, cT, cO(i) + 3))
            else:
                a("v_max_u32 v%d, v%d, v%d" % (cT, cML, cML + 1))
            a("v_cmp_eq_u32 vcc, -1, v%d" % cT)
        a.label("L_sel")
        a("s_mov_b32 s%d, 0" % sMASK)
        for i in range(17):
            chk(i)
            a("s_cmp_lg_u64 vcc, 0")
            a("s_cselect_b32 s3, 0x%x, 0" % (1 << i))
            a("s_or_b32 s%d, s%d, s3" % (sMASK, sMASK))
        a("s_lshl_b32 s5, s%d, 8" % sHX)
        a.label("L_poll")
        def each(fn, tag):
            for g in range(5):
                idxs = list(range(4 * g, min(4 * g + 4, 17)))
                lg = "L_%s_g%d" % (tag, g)
                if len(idxs) > 1:
                    a("s_and_b32 s3, s%d, 0x%x" % (sMASK, 0xf << (4 * g)))
                    a("s_cbranch_scc0 %s" % lg)
                for i in idxs:
                    li = "L_%s_%d" % (tag, i)
                    a("s_bitcmp1_b32 s%d, %d" % (sMASK, i))
                    a("s_cbranch_scc0 %s" % li)
                    fn(i, li)
                    a.label(li)
                if len(idxs) > 1:
                    a.label(lg)
        def ld1(i, li):
            if i < 16:
                a("s_add_u32 s4, s5, %d" % (i * 4096))
                a("buffer_load_dwordx4 %s, v%d, s[%d:%d], s4 offen sc1" % (vr(cO(i), 4), vCA0, WSRD, WSRD + 3))
            else:
                a("s_add_u32 s4, s5, %d" % REG_O)
                a("buffer_load_dwordx2 %s, v%d, s[%d:%d], s4 offen sc1" % (vr(cML, 2), vCM, WSRD, WSRD + 3))
        each(ld1, "pl")
        a("s_waitcnt vmcnt(0)")
        def ck1(i, li):
            chk(i)
            a("s_cbranch_vccnz %s" % li)
            a("s_bitset0_b32 s%d, %d" % (sMASK, i))
        each(ck1, "pc")
        a("s_add_u32 s%d, s%d, 1" % (sIT, sIT))
        a("s_cmp_gt_u32 s%d, 0x400000" % sIT)
        a("s_cbranch_scc1 L_combfin")
        a("s_cmp_lg_u32 s%d, 0" % sMASK)
        a("s_cbranch_scc1 L_poll")
        a("s_branch L_comb_use")

    if deep:
        a.label("L_deepdisp")
        for k in range(1, DM):
            a("s_cmp_eq_u32 s%d, %d" % (sSTAGE, D + k))
            a("s_cbranch_scc1 L_st%d" % (D + k))
        for k in range(DM):
            stage_body(k, DM, D, False)

    a.label("L_slowstart")
    get_consts("S", DM + 2 * (DM - 1))
    a("v_lshlrev_b32 v%d, 5, v%d" % (vT0, vLANE))
    a("v_add_u32 v%d, s%d, v%d" % (vT0, sSPLIT, vT0))
    a("v_lshlrev_b32 v%d, 3, v%d" % (vT0, vT0))
    a("ds_read_b64 %s, v%d offset:%d" % (vr(vS + 12, 2), vT0, L_LIST))
    a("s_waitcnt vmcnt(0) lgkmcnt(0)")
    for k in range(DM):
        if k == D:
            a("s_cmp_lt_u32 s%d, %d" % (sLK, deep))
            a("s_cbranch_scc0 L_loop")
        a("v_readlane_b32 s%d, v%d, %d" % (sOFF, vS + 12, k))
        a("v_readlane_b32 s%d, v%d, %d" % (sDESC + k, vS + 13, k))
        a("s_add_u32 s3, s%d, %d" % (sSPLIT, 32 * k))
        a("s_cmp_lt_u32 s3, s%d" % sU)
        a("s_cselect_b32 s%d, 0x%x, 0" % (KS + 2, CACHE_BYTES))
        a("s_cselect_b32 s%d, s%d, 0" % (sDESC + k, sDESC + k))
        a("s_cselect_b32 s%d, s%d, 0" % (sOFF, sOFF))
        a("s_mov_b32 s%d, s%d" % (VS + 2, KS + 2))
        dummyC(k)
        issue(k)
    a("s_branch L_loop")

    a.label("L_getconst")
    get_consts("F", (NL - 1 + DM + 2 * (DM - 1)) if deep else (NL + D + 2 * LEAD))
    stamp(4)
    a("s_branch L_loop")

    e0, e1, e2 = vU, vU + 1, vU + 2
    a.label("L_elect")
    a("s_waitcnt lgkmcnt(0)")
    a("s_mov_b32 s5, 0")
    a.label("L_el_poll")
    a("s_mov_b64 exec, 1")
    a("global_load_dword v%d, v%d, %s sc1" % (e0, vLA, sp(sDBG)))
    a("s_mov_b64 exec, -1")
    a("s_waitcnt vmcnt(0)")
    a("v_readfirstlane_b32 s4, v%d" % e0)
    a("s_lshr_b32 s4, s4, 16")
    a("s_cmp_lg_u32 s4, 0")
    a("s_cbranch_scc1 L_el_ret")
    a("s_add_u32 s5, s5, 1")
    a("s_cmp_lg_u32 s5, 12")
    a("s_cbranch_scc1 L_el_poll")
    a("s_mov_b64 exec, 1")
    a("global_atomic_add v%d, v%d, v%d, %s sc0" % (e0, vLA, vONE, sp(sDBG)))
    a("s_mov_b64 exec, -1")
    a("s_waitcnt vmcnt(0)")
    a("v_readfirstlane_b32 s4, v%d" % e0)
    a("s_and_b32 s4, s4, 0xffff")
    a("s_cmp_lg_u32 s4, 0")
    a("s_cbranch_scc1 L_el_poll")
    a("s_lshl_b32 s4, s%d, 8" % sW)
    a("v_lshlrev_b32 v%d, 8, v%d" % (e1, vLANE))
    a("v_add_u32 v%d, v%d, v%d" % (e1, e1, vCA))
    a("v_subrev_u32 v%d, s4, v%d" % (e1, e1))
    a("v_mov_b32 v%d, 0" % e2)
    a("s_mov_b64 exec, 0xff")
    a("global_atomic_swap v%d, v%d, v%d, %s sc0" % (e0, e1, e2, sp(sWS)))
    a("s_waitcnt vmcnt(0)")
    a("v_mov_b32 v%d, 0x10000" % e2)
    a("s_mov_b64 exec, 1")
    a("global_atomic_add v%d, v%d, %s" % (vLA, e2, sp(sDBG)))
    a("s_mov_b64 exec, -1")
    a("s_waitcnt vmcnt(0)")
    a.label("L_el_ret")
    a("s_mov_b32 s%d, 1" % sFOK)
    a("s_branch L_loop")

    a.label("L_builder")
    E = lambda r, b: 32 + 2 * (4 * r + b)
    bJ = 96
    bNV = 100
    bL16 = 104
    bA, bB, bD = 105, 106, 108
    bT0, bT1 = 113, 114
    sVm = {0: 52, 1: 54, 2: 56, 3: 58}
    sLd = {0: 52, 1: 60, 2: 62, 3: 64}
    sE = {(0, 1): 66, (0, 2): 68, (0, 3): 70, (1, 2): 72, (1, 3): 74, (2, 3): 76}
    sM = {0: 78, 1: 80, 2: 82}
    sT = 84
    sCNT = 86
    ctx_load()
    if bdelay:
        a("s_mov_b32 s3, %d" % bdelay)
        a.label("L_b_delay0")
        a("s_sub_u32 s3, s3, 1")
        a("s_cmp_lg_u32 s3, 0")
        a("s_cbranch_scc1 L_b_delay0")
    a("v_lshlrev_b32 v%d, 2, v%d" % (bJ, vLANE))
    for b in range(1, 4):
        a("v_add_u32 v%d, %d, v%d" % (bJ + b, b * 2048, bJ))
    for r in range(8):
        for b in range(4):
            a("global_load_dword v%d, v%d, %s offset:%d" % (E(r, b), bJ + b, sp(sBT), r * 256))
    a("s_lshl_b32 s3, s%d, 2" % sHG)
    a("s_mul_i32 s3, s3, %d" % REGION)
    a("s_lshl_b32 s4, s%d, 11" % sSPLIT)
    a("s_add_u32 s4, s4, s3")
    a("v_lshlrev_b32 v%d, 4, v%d" % (bL16, vLANE))
    a("v_add_u32 v%d, s4, v%d" % (bA, bL16))
    a("v_lshrrev_b32 v%d, 2, v%d" % (bB, vLANE))
    a("v_mul_u32_u24 v%d, %d, v%d" % (bB, REGION, bB))
    a("v_and_b32 v%d, 3, v%d" % (bT0, vLANE))
    a("v_lshl_add_u32 v%d, v%d, 8, v%d" % (bB, bT0, bB))
    a("s_lshl_b32 s4, s%d, 3" % sSPLIT)
    a("s_add_u32 s4, s4, s3")
    a("s_add_u32 s4, s4, %d" % REG_O)
    a("v_add_u32 v%d, s4, v%d" % (bB, bB))
    for k in range(4):
        a("v_mov_b32 v%d, -1" % (bD + k))
    def b_prefill():
        for b in range(4):
            a("global_store_dwordx4 v%d, %s, %s sc1" % (bA, vr(bD, 4), sp(sWS)))
            a("global_store_dwordx4 v%d, %s, %s offset:1024 sc1" % (bA, vr(bD, 4), sp(sWS)))
            if b < 3:
                a("v_add_u32 v%d, %d, v%d" % (bA, REGION, bA))
        a("s_mov_b64 exec, 0xffff")
        a("global_store_dwordx2 v%d, %s, %s sc1" % (bB, vr(bD, 2), sp(sWS)))
        a("s_mov_b64 exec, -1")
    if pfpos == 0:
        b_prefill()
    a("v_mov_b32 v%d, 1" % vINI)
    a("s_mov_b32 s%d, s%d" % (sX_ := 94, sSPLIT))
    if nopref:
        a("s_or_b32 s94, s94, 64")
    a("s_cmp_lg_u32 s94, 0")
    a("s_cbranch_scc1 L_b_noel")
    a("s_mov_b64 exec, 1")
    a("global_atomic_add v%d, v%d, v%d, %s sc0" % (vINI, vLA, vONE, sp(sDBG)))
    a("s_mov_b64 exec, -1")
    a.label("L_b_noel")
    for i in range(8):
        a("s_mov_b32 s%d, 0" % (sCNT + i))
    a("s_waitcnt lgkmcnt(0)")
    ctx_norm()
    for r in range(8):
        hf = r >> 2
        if r == 0:
            a("s_waitcnt vmcnt(%d)" % (9 if pfpos == 0 else 0))
            stamp(2)
            if pfpos == 1:
                b_prefill()
        ID = lambda b: E(r, b)
        CW = lambda b: E(r, b) + 1
        for b in range(4):
            a("s_sub_u32 s3, s%d, %d" % (sCE + b, r * 1024))
            a("v_sub_u32 v%d, s3, v%d" % (bNV + b, bL16))
            a("v_med3_i32 v%d, v%d, 0, 16" % (bNV + b, bNV + b))
        for b in range(4):
            a("v_cmp_lt_u32 %s, 0, v%d" % (sp(sVm[b]), bNV + b))
        for b in range(1, 4):
            a("v_lshlrev_b32 v%d, %d, v%d" % (bNV + b, 8 * b, bNV + b))
        for b in range(4):
            a("v_cmp_gt_i32 vcc, 0, v%d" % ID(b))
            a("v_add_u32 v%d, 1280, v%d" % (bT0, ID(b)))
            a("v_cndmask_b32 v%d, v%d, v%d, vcc" % (ID(b), ID(b), bT0))
            a("v_min_u32 v%d, 1279, v%d" % (ID(b), ID(b)))
        for (x, y), s in sE.items():
            a("v_cmp_eq_u32 %s, v%d, v%d" % (sp(s), ID(x), ID(y)))
        for x in range(4):
            first = True
            for y in range(x + 1, 4):
                a("v_cndmask_b32 v%d, 0, v%d, %s" % (bT0, bNV + y, sp(sE[(x, y)])))
                a("v_or_b32 v%d, v%d, v%d" % (CW(x), bT0, bNV + x if first else CW(x)))
                first = False
            if first:
                a("v_or_b32 v%d, %d, v%d" % (CW(x), x << 5, bNV + x))
        for y in range(1, 4):
            for x in range(y):
                a("s_and_b64 %s, %s, %s" % (sp(sT), sp(sVm[x]), sp(sE[(x, y)])))
                src = sp(sVm[y]) if x == 0 else sp(sLd[y])
                a("s_andn2_b64 %s, %s, %s" % (sp(sLd[y]), src, sp(sT)))
        for x in range(3):
            for y in range(x + 1, 4):
                if y == x + 1:
                    a("s_and_b64 %s, %s, %s" % (sp(sM[x]), sp(sE[(x, y)]), sp(sVm[y])))
                else:
                    a("s_and_b64 %s, %s, %s" % (sp(sT), sp(sE[(x, y)]), sp(sVm[y])))
                    a("s_or_b64 %s, %s, %s" % (sp(sM[x]), sp(sM[x]), sp(sT)))
        for x in range(3):
            a("v_mov_b32 v%d, %d" % (bT0, x << 5))
            a("v_mov_b32 v%d, %d" % (bT1, 4 << 5))
            a("v_cndmask_b32 v%d, v%d, v%d, %s" % (bT0, bT0, bT1, sp(sM[x])))
            a("v_or_b32 v%d, v%d, v%d" % (CW(x), CW(x), bT0))
        for x in range(4):
            a("v_lshlrev_b32 v%d, 17, v%d" % (ID(x), ID(x)))
            a("v_cndmask_b32 v%d, 0, v%d, %s" % (CW(x), CW(x), sp(sLd[x])))
            a("s_bcnt1_i32_b64 s3, %s" % sp(sLd[x]))
            a("s_add_u32 s%d, s%d, s3" % (sCNT + hf * 4 + x, sCNT + hf * 4 + x))
    stamp(3)
    if pfpos == 2:
        b_prefill()
    a("s_mov_b32 s4, 0")
    for c in range(8):
        a("s_mov_b32 s3, s%d" % (sCNT + c))
        a("s_mov_b32 s%d, s4" % (sCNT + c))
        a("s_add_u32 s4, s4, s3")
    a("s_add_u32 s95, s4, 1")
    for r in range(8):
        hf = r >> 2
        for b in range(4):
            c = sCNT + hf * 4 + b
            a("v_cmp_ne_u32 %s, 0, v%d" % (sp(sT), E(r, b) + 1))
            a("v_mbcnt_lo_u32_b32 v%d, s%d, 0" % (bT0, sT))
            a("v_mbcnt_hi_u32_b32 v%d, s%d, v%d" % (bT0, sT + 1, bT0))
            a("v_add_lshl_u32 v%d, v%d, s%d, 3" % (bT0, bT0, c))
            a("s_bcnt1_i32_b64 s3, %s" % sp(sT))
            a("s_mov_b64 exec, %s" % sp(sT))
            a("ds_write_b64 v%d, %s offset:%d" % (bT0, vr(E(r, b), 2), L_LIST))
            a("s_mov_b64 exec, -1")
            a("s_add_u32 s%d, s%d, s3" % (c, c))
    if slowb:
        a("s_mov_b32 s3, %d" % slowb)
        a.label("L_b_delay")
        a("s_sub_u32 s3, s3, 1")
        a("s_cmp_lg_u32 s3, 0")
        a("s_cbranch_scc1 L_b_delay")
    a("v_mov_b32 v%d, s95" % bT1)
    a("s_waitcnt vmcnt(0) lgkmcnt(0)")
    a("ds_write_b32 v%d, v%d offset:%d" % (vZ, bT1, L_FLAG))
    if tail2:
        a("s_mov_b64 exec, 1")
        a("global_atomic_add v%d, v%d, %s offset:4" % (vLA, vONE, sp(sDBG)))
        a("s_mov_b64 exec, -1")
    stamp(4)
    a("v_readfirstlane_b32 s3, v%d" % vINI)
    a("s_and_b32 s3, s3, 0xffff")
    a("s_cmp_lg_u32 s3, 0")
    a("s_cbranch_scc1 L_b_end")
    a("s_lshl_b32 s3, s%d, 11" % sHG)
    a("s_add_u32 s3, s3, 0x%x" % CTR_OFF)
    a("v_lshlrev_b32 v%d, 8, v%d" % (bT0, vLANE))
    a("v_add_u32 v%d, s3, v%d" % (bT0, bT0))
    a("v_mov_b32 v%d, 0" % bT1)
    a("s_mov_b64 exec, 0xff")
    a("global_atomic_swap v%d, v%d, v%d, %s sc0" % (bNV, bT0, bT1, sp(sWS)))
    a("s_waitcnt vmcnt(0)")
    a("v_mov_b32 v%d, 0x10000" % bT1)
    a("s_mov_b64 exec, 1")
    a("global_atomic_add v%d, v%d, %s" % (vLA, bT1, sp(sDBG)))
    a("s_mov_b64 exec, -1")
    a.label("L_b_end")
    if hst == 2:
        a("s_not_b32 s3, s100")
        a("v_mov_b32 v%d, s3" % bT0)
        a("v_mov_b32 v%d, 8" % bT1)
        a("s_mov_b64 exec, 1")
        a("global_atomic_umax v%d, v%d, %s" % (bT1, bT0, sp(sDBG)))
    if stamps:
        a("s_mov_b32 s%d, 0" % sN)
        def sl2():
            a("s_add_u32 s3, s2, 1024")
        stamps_out(sl2)
    a("s_waitcnt lgkmcnt(0)")
    if warm:
        a("s_waitcnt vmcnt(0)")
        a("s_mov_b64 exec, 0")
        a("s_branch L_wp0")
    else:
        a("s_endpgm")
    a.label("L_code_end")

    body = a.text()
    hdr = HEADER + "; @launch grid=(256,1,1) block=(320,1,1) lds=%d\n" % LDS_BYTES
    nvv = (NV + 3) // 4 * 4
    tail = """.section .rodata,"a"
.p2align 6
.amdhsa_kernel %s_kernel
  .amdhsa_next_free_vgpr %d
  .amdhsa_next_free_sgpr %d
  .amdhsa_accum_offset %d
  .amdhsa_group_segment_fixed_size 0
  .amdhsa_kernarg_size 64
  .amdhsa_user_sgpr_count 2
  .amdhsa_user_sgpr_kernarg_segment_ptr 1
  .amdhsa_system_sgpr_workgroup_id_x 1
.end_amdhsa_kernel
""" % (NAME, nvv, 102, nvv)
    if warm:
        from warmpass import warm as warmfn
        t, n = warmfn(hdr + body + tail, warm)
        sys.stderr.write("warm pads: %d\n" % n)
        return t
    return hdr + body + tail


if __name__ == "__main__":
    ap = argparse.ArgumentParser()
    ap.add_argument("-D", type=int, default=3)
    ap.add_argument("--ld", default="nt")
    ap.add_argument("--fnum", type=int, default=4)
    ap.add_argument("--stamps", type=int, default=0)
    ap.add_argument("--nopref", type=int, default=0)
    ap.add_argument("--prio", type=int, default=0)
    ap.add_argument("--nl", type=int, default=None)
    ap.add_argument("--slowb", type=int, default=0)
    ap.add_argument("--qpos", type=int, default=0)
    ap.add_argument("--bdelay", type=int, default=0)
    ap.add_argument("--pfpos", type=int, default=0)
    ap.add_argument("--warm", type=int, default=0)
    ap.add_argument("--tail2", type=int, default=0)
    ap.add_argument("--tail3", type=int, default=0)
    ap.add_argument("--psets", type=int, default=1)
    ap.add_argument("--pslp", type=int, default=0)
    ap.add_argument("--tlbw", type=int, default=0)
    ap.add_argument("--lead", type=int, default=0)
    ap.add_argument("--deep", type=int, default=0)
    ap.add_argument("--hst", type=int, default=0)
    ap.add_argument("--cnt", type=int, default=0)
    ap.add_argument("--ldspad", type=int, default=84 * 1024)
    ap.add_argument("-o", required=True)
    args = ap.parse_args()
    open(args.o, "w").write(gen(args.D, args.ld, args.fnum, args.stamps, args.ldspad, args.nopref, args.prio, args.nl, 4, args.slowb, args.qpos, args.bdelay, args.warm, args.pfpos, args.tail2, args.tail3, args.psets, args.pslp, args.tlbw, args.lead, args.deep, args.hst, args.cnt))
```

```python
import sys, argparse, struct, math
sys.path.insert(0, "gen")
from asmlib import Asm

NAME = "standalone__paged_block_table_kv_radixattention__decode"

HEADER = """; Kernarg layout for this problem (64 bytes, ptrs only, base s[0:1]):
"""


def f32bits(x):
    return struct.unpack("<I", struct.pack("<f", x))[0]


def gen(D=3, ld="nt", fnum=4, stamps=0, lds_pad=84 * 1024, nopref=0, prio=0, nl=None, ncomb=4, slowb=0, qpos=0, bdelay=0, warm=0, pfpos=0, tail2=0, tail3=0, psets=1, pslp=0, tlbw=0, lead=0, deep=0, hst=0, cnt=0, tab=0, thr=0, thr7=0):
    CACHE_BYTES = 1280 * 131072
    REG_O = 32 * 2048
    REGION = REG_O + 1024
    CTR_OFF = 0x400000
    LEAD = D - 1
    assert LEAD >= 1
    WAITN = 8 * (D - 1) + (D - 2)
    NL = 8 - D if nl is None else nl
    assert 0 <= NL <= 8 - D
    a = Asm()
    if tail3:
        tail2 = 1
        assert tail3 in (16, 32)
        ncomb = tail3

    sQ, sK, sV, sBT, sCTX, sOUT, sDBG, sWS = 8, 10, 12, 14, 16, 18, 20, 22
    KS, VS = 24, 28
    sCE = 32
    sW, sHG, sSPLIT = 36, 37, 38
    sC, sHI = 39, 40
    sN, sU, sSTAGE = 41, 42, 43
    sCUR, sOFF = 44, 45
    sNV = 46
    sTYPE, sSS = 50, 51
    sDESC = 60
    sNC, sDYN0, sEXH, sFOK, sNEW, sP, sCL = 64, 65, 66, 67, 68, 69, 70
    sNF = 71
    sSTOPN = 72
    sLOK = 73
    sQZ = 96
    sRECO, sREGO = 74, 75
    sLK, sX2 = 80, 81
    sDL, sLD = 82, 83
    WSRD = 76 if tail3 else 60

    def sp(x):
        return "s[%d:%d]" % (x, x + 1)

    vLANE = 1
    vOFF = 2
    vTOK, vNEG, vCA, vONE = 6, 7, 8, 9
    vT0, vT1 = 10, 11
    vQ = 12
    vO = 28
    vM = 60
    vL = 64
    vS = 68
    vA = 84
    vPB = 92
    vU = 100
    vW = 116
    vR = 148
    DM = D + 1 if deep else D
    if deep:
        assert D == 2 and qpos == 1 and not lead and not tail3 and stamps != 3
    vCLM = vR + 32 * DM
    vLA = vCLM + DM
    vINI = vLA + 1
    vZ = vINI + 1
    vPK = vZ + 1
    NV = vPK + 1
    vLW0, vLW1, vLR0, vLR1, vL16p, vSTM, vCD, vCD2, vCMa, vOAp = range(NV, NV + 10)
    if tail3:
        NV += 10
    vST = NV
    if stamps:
        NV += 1
    NV = max(NV, 160)
    assert NV <= 256

    def vr(x, n):
        return "v[%d:%d]" % (x, x + n - 1)

    def stamp(idx):
        if not stamps:
            return
        a("s_memrealtime s[100:101]")
        a("s_waitcnt lgkmcnt(0)")
        a("v_writelane_b32 v%d, s100, %s" % (vST, idx))

    L_FLAG, L_LIST = 0, 256
    L_ML = L_LIST + 2048 * 8
    L_OB = L_ML + 512
    LDS_USED = L_OB + 16 * 2048
    LDS_BYTES = max(LDS_USED, lds_pad)

    def issue(k, st=None):
        base = vR + 32 * k
        for i in range(4):
            a("buffer_load_dwordx4 %s, v%d, s[%d:%d], s%d offen %s" % (vr(base + 4 * i, 4), vOFF + i, KS, KS + 3, sOFF, ld))
            if st is not None:
                stamp(st + i)
        for i in range(4):
            a("buffer_load_dwordx4 %s, v%d, s[%d:%d], s%d offen %s" % (vr(base + 16 + 4 * i, 4), vOFF + i, VS, VS + 3, sOFF, ld))
            if st is not None:
                stamp(st + 4 + i)

    def dummyC(k):
        a("global_load_dword v%d, v%d, %s" % (vCLM + k, vZ, sp(sBT)))

    def ctx_load():
        a("s_load_dwordx4 s[%d:%d], %s, 0" % (sCE, sCE + 3, sp(sCTX)))

    def ctx_norm():
        a("s_mov_b32 s%d, 0" % sQZ)
        for b in range(4):
            a("s_cmp_le_i32 s%d, 0" % (sCE + b))
            a("s_cselect_b32 s3, %d, 0" % (1 << b))
            a("s_cselect_b32 s%d, 8192, s%d" % (sCE + b, sCE + b))
            a("s_or_b32 s%d, s%d, s3" % (sQZ, sQZ))
            a("s_min_i32 s%d, s%d, 8192" % (sCE + b, sCE + b))

    def get_consts(tag, ssmin):
        e0 = vU
        a("s_waitcnt lgkmcnt(0)")
        a.label("L_gc_spin%s" % tag)
        a("ds_read_b32 v%d, v%d offset:%d" % (e0, vZ, L_FLAG))
        a("s_waitcnt lgkmcnt(0)")
        a("v_readfirstlane_b32 s%d, v%d" % (sU, e0))
        a("s_cmp_eq_u32 s%d, 0" % sU)
        a("s_cbranch_scc1 L_gc_spin%s" % tag)
        a("s_sub_u32 s%d, s%d, 1" % (sU, sU))
        a("s_mul_i32 s%d, s%d, %d" % (sSS, sU, fnum))
        a("s_lshr_b32 s%d, s%d, 8" % (sSS, sSS))
        a("s_max_u32 s%d, s%d, %d" % (sSS, sSS, ssmin))
        a("s_lshl_b32 s%d, s%d, 5" % (sDYN0, sSS))
        if deep:
            a("s_sub_u32 s%d, s%d, s%d" % (sNC, sSS, sDL))
            a("s_sub_u32 s%d, s%d, s%d" % (sNF, sNC, sLD))
        else:
            a("s_sub_u32 s%d, s%d, %d" % (sNC, sSS, D + LEAD))
            a("s_sub_u32 s%d, s%d, %d" % (sNF, sNC, LEAD))

    a.raw(".amdgcn_target \"amdgcn-amd-amdhsa--gfx950\"")
    a.raw(".text")
    a.raw(".globl %s_kernel" % NAME)
    a.raw(".p2align 8")
    a.raw(".type %s_kernel,@function" % NAME)
    a.raw("%s_kernel:" % NAME)
    a("s_cmp_ge_u32 s2, 256")
    a("s_cbranch_scc1 L_exit2")
    if stamps:
        a("v_mov_b32 v%d, 0" % vST)
        stamp(0)
    if hst:
        assert not stamps
        a("s_memrealtime s[100:101]")
    a("s_load_dwordx16 s[8:23], s[0:1], 0")
    if tab:
        a("s_waitcnt lgkmcnt(0)")
        a("s_lshl_b32 s3, s2, 2")
        a("s_add_u32 s3, s3, 1024")
        a("s_load_dword s2, s[20:21], s3")
        a("s_waitcnt lgkmcnt(0)")
    a("v_mov_b32 v%d, 0" % vZ)
    a("ds_write_b32 v%d, v%d offset:%d" % (vZ, vZ, L_FLAG))
    a("v_and_b32 v%d, 63, v0" % vLANE)
    a("v_lshrrev_b32 v%d, 6, v0" % vT0)
    a("v_readfirstlane_b32 s%d, v%d" % (sW, vT0))
    a("s_lshr_b32 s3, s2, 6")
    a("s_lshl_b32 s3, s3, 3")
    a("s_and_b32 s4, s2, 7")
    a("s_or_b32 s%d, s3, s4" % sSPLIT)
    a("s_bfe_u32 s%d, s2, 0x30003" % sHG)
    a("s_mov_b32 s%d, 0x%08x" % (sC, f32bits(128 ** -0.5 * math.log2(math.e))))
    a("s_mov_b32 s%d, 0xffff0000" % sHI)
    t0, t1, t2, t3 = vS, vS + 1, vS + 2, vS + 3
    a("v_lshlrev_b32 v%d, 4, v%d" % (t1, vLANE))
    a("s_lshl_b32 s3, s%d, 10" % sHG)
    a("v_add_u32 v%d, s3, v%d" % (t3, t1))
    a("s_lshl_b32 s4, s%d, 2" % sW)
    a("s_lshl_b32 s5, s4, 13")
    a("v_add_u32 v%d, s5, v%d" % (vOFF, t3))
    for i in range(1, 4):
        a("v_add_u32 v%d, %d, v%d" % (vOFF + i, i * 8192, vOFF))
    a("v_bfe_u32 v%d, v%d, 2, 1" % (t2, vLANE))
    a("v_bfe_u32 v%d, v%d, 3, 1" % (vTOK, vLANE))
    a("v_lshlrev_b32 v%d, 1, v%d" % (vTOK, vTOK))
    a("v_or3_b32 v%d, v%d, v%d, s4" % (vTOK, vTOK, t2))
    a("v_mov_b32 v%d, 0xff800000" % vNEG)
    a("v_mov_b32 v%d, 1" % vONE)
    vQo = vS + 6
    for b in range(1, 4):
        a("v_add_u32 v%d, %d, v%d" % (vQo + b - 1, b * 8192, t3))
    a("s_lshl_b32 s3, s%d, 3" % sHG)
    a("s_add_u32 s3, s3, s%d" % sW)
    a("s_lshl_b32 s3, s3, 8")
    a("s_add_u32 s3, s3, 0x%x" % CTR_OFF)
    a("v_mov_b32 v%d, s3" % vCA)
    if cnt:
        a("s_lshl_b32 s3, s%d, 2" % sHG)
        a("s_add_u32 s3, s3, 128")
    else:
        a("s_lshl_b32 s3, s%d, 5" % sHG)
    a("v_mov_b32 v%d, s3" % vLA)
    vEK, vEB, vEI, vEP = vS + 10, vS + 11, vS + 12, vS + 13
    a("v_bfe_u32 v%d, v%d, 2, 3" % (vEK, vLANE))
    a("v_and_b32 v%d, 3, v%d" % (vEB, vLANE))
    vEA = vS + 9
    a("v_lshlrev_b32 v%d, 7, v%d" % (vEA, vEK))
    a("v_lshl_add_u32 v%d, v%d, 11, v%d" % (vEA, vEB, vEA))
    a("s_lshl_b32 s5, s%d, 2" % sSPLIT)
    a("v_add_u32 v%d, s5, v%d" % (vEA, vEA))
    a("s_waitcnt lgkmcnt(0)")
    a("s_barrier")
    stamp(1)
    a("s_cmp_eq_u32 s%d, 4" % sW)
    a("s_cbranch_scc1 L_builder")
    if prio:
        a("s_setprio %d" % prio)
    a("s_add_u32 s6, s%d, s5" % sBT)
    a("s_addc_u32 s7, s%d, 0" % (sBT + 1))
    for k in range(D):
        a("s_load_dword s%d, s[6:7], 0x%x" % (sDESC + k, 128 * k))
    if lead:
        a("s_load_dword s%d, s[6:7], 0x%x" % (sX2, 128 * D))
    if deep:
        a("s_load_dword s%d, s[6:7], 0x%x" % (sDESC + D, 128 * D))
    ctx_load()
    def idq_loads():
        a("global_load_dword v%d, v%d, %s" % (vEI, vEA, sp(sBT)))
        a("global_load_dwordx4 %s, v%d, %s" % (vr(vQ, 4), t3, sp(sQ)))
        for b in range(1, 4):
            a("global_load_dwordx4 %s, v%d, %s" % (vr(vQ + 4 * b, 4), vQo + b - 1, sp(sQ)))
        stamp(63)
    if qpos == 0:
        idq_loads()
    a("s_mov_b32 s%d, s%d" % (KS, sK))
    a("s_and_b32 s%d, s%d, 0xffff" % (KS + 1, sK + 1))
    a("s_mov_b32 s%d, 0x%x" % (KS + 2, CACHE_BYTES))
    a("s_mov_b32 s%d, 0x00020000" % (KS + 3))
    a("s_mov_b32 s%d, s%d" % (VS, sV))
    a("s_and_b32 s%d, s%d, 0xffff" % (VS + 1, sV + 1))
    a("s_mov_b32 s%d, 0x%x" % (VS + 2, CACHE_BYTES))
    a("s_mov_b32 s%d, 0x00020000" % (VS + 3))
    if lead or deep:
        a("s_sub_u32 s%d, 7, s%d" % (sLK, sHG))
        a("s_lshl_b32 s%d, s%d, 5" % (sLK, sLK))
        a("s_add_u32 s%d, s%d, s%d" % (sLK, sLK, sSPLIT))
    a("s_waitcnt lgkmcnt(0)")
    if lead:
        a("s_cmp_lt_u32 s%d, %d" % (sLK, lead))
        a("s_cbranch_scc0 L_nolead")
        a("s_add_u32 s3, s%d, 1280" % sDESC)
        a("s_cmp_lt_i32 s%d, 0" % sDESC)
        a("s_cselect_b32 s3, s3, s%d" % sDESC)
        a("s_min_u32 s3, s3, 1279")
        a("s_lshl_b32 s%d, s3, 17" % sOFF)
        issue((vW - vR) // 32)
        for k in range(D - 1):
            a("s_mov_b32 s%d, s%d" % (sDESC + k, sDESC + k + 1))
        a("s_mov_b32 s%d, s%d" % (sDESC + D - 1, sX2))
        a.label("L_nolead")
    def first_issue(k):
        a("s_add_u32 s3, s%d, 1280" % (sDESC + k))
        a("s_cmp_lt_i32 s%d, 0" % (sDESC + k))
        a("s_cselect_b32 s3, s3, s%d" % (sDESC + k))
        a("s_min_u32 s3, s3, 1279")
        a("s_lshl_b32 s%d, s3, 17" % sOFF)
        dummyC(k)
        issue(k, (16 + 8 * k) if stamps == 3 else None)
        stamp(60 + k)
    if deep:
        first_issue(0)
        a("s_cmp_lt_u32 s%d, %d" % (sLK, deep))
        a("s_cbranch_scc0 L_nodeep")
        first_issue(1)
        idq_loads()
        first_issue(2)
        a("s_branch L_deepjoin")
        a.label("L_nodeep")
        idq_loads()
        first_issue(1)
        a.label("L_deepjoin")
    else:
        for k in range(D):
            first_issue(k)
            if qpos == k + 1:
                idq_loads()
    stamp(3)
    for b in range(4):
        for k in range(8):
            a("v_mov_b32 v%d, 0" % (vO + 8 * b + k))
        a("v_mov_b32 v%d, 0xf149f2ca" % (vM + b))
        a("v_mov_b32 v%d, 0" % (vL + b))
    ctx_norm()
    vEC, vEN = vS + 14, vS + 15
    a("v_mov_b32 v%d, s%d" % (vEC, sCE))
    for b in range(1, 4):
        a("s_mov_b32 exec_lo, 0x%08x" % (0x11111111 << b))
        a("s_mov_b32 exec_hi, 0x%08x" % (0x11111111 << b))
        a("v_mov_b32 v%d, s%d" % (vEC, sCE + b))
    a("s_mov_b64 exec, -1")
    a("v_lshlrev_b32 v%d, 9, v%d" % (vT0, vEK))
    a("s_lshl_b32 s3, s%d, 4" % sSPLIT)
    a("v_add_u32 v%d, s3, v%d" % (vT0, vT0))
    a("v_sub_u32 v%d, v%d, v%d" % (vEN, vEC, vT0))
    a("v_med3_i32 v%d, v%d, 0, 16" % (vEN, vEN))
    a("v_lshlrev_b32 v%d, 3, v%d" % (vT1, vEB))
    a("v_lshlrev_b32 v%d, v%d, v%d" % (vEN, vT1, vEN))
    a("v_lshrrev_b32 v%d, 1, v%d" % (vT0, vT0))
    a("s_mov_b32 s%d, 0x1000" % sSS)
    a("s_mov_b32 s%d, 0x1000" % sU)
    a("s_mov_b32 s%d, -1" % sNC)
    if deep:
        a("s_cmp_lt_u32 s%d, %d" % (sLK, deep))
        a("s_cselect_b32 s%d, %d, %d" % (sNF, NL - 1, NL))
        a("s_cselect_b32 s%d, %d, %d" % (sDL, 2 * D + 1, 2 * D - 1))
        a("s_cselect_b32 s%d, %d, %d" % (sLD, D, D - 1))
        a("s_cselect_b32 s%d, %d, 0" % (sSTAGE, D))
    else:
        a("s_mov_b32 s%d, %d" % (sNF, NL))
    a("s_mov_b32 s%d, 0" % sDYN0)
    a("s_mov_b32 s%d, 0" % sEXH)
    a("s_mov_b32 s%d, -1" % sSTOPN)
    a("s_mov_b32 s%d, 0" % sFOK)
    a("s_mov_b32 s%d, 0" % sN)
    if not deep:
        a("s_mov_b32 s%d, 0" % sSTAGE)
    if tail3:
        cb = 3 if tail3 == 16 else 2
        tA, tB = vA, vA + 1
        a("v_lshlrev_b32 v%d, 4, v%d" % (vL16p, vLANE))
        a("s_lshl_b32 s3, s%d, 13" % sW)
        a("v_add_u32 v%d, s3, v%d" % (vLW0, vL16p))
        a("s_lshl_b32 s3, s%d, 11" % sW)
        a("v_add_u32 v%d, s3, v%d" % (vLR0, vL16p))
        a("v_lshrrev_b32 v%d, 4, v%d" % (tA, vLANE))
        a("v_lshlrev_b32 v%d, 3, v%d" % (tB, tA))
        a("s_lshl_b32 s3, s%d, 7" % sW)
        a("v_add_u32 v%d, s3, v%d" % (vLW1, tB))
        a("s_lshl_b32 s3, s%d, 5" % sW)
        a("v_add_u32 v%d, s3, v%d" % (vLR1, tB))
        a("s_lshl_b32 s3, s%d, 3" % sSPLIT)
        a("v_lshlrev_b32 v%d, 8, v%d" % (vSTM, tA))
        a("v_add_u32 v%d, s3, v%d" % (vSTM, vSTM))
        a("v_and_b32 v%d, 1, v%d" % (tB, tA))
        a("v_lshlrev_b32 v%d, 2, v%d" % (tB, tB))
        a("v_and_b32 v%d, 2, v%d" % (tA, tA))
        a("v_add_u32 v%d, v%d, v%d" % (tB, tB, tA))
        a("v_and_b32 v%d, %d, v%d" % (tA, (1 << cb) - 1, vLANE))
        a("v_lshl_add_u32 v%d, v%d, 4, v%d" % (tB, tA, tB))
        a("s_lshl_b32 s3, s%d, 13" % sW)
        a("s_lshl_b32 s4, s%d, 10" % sHG)
        a("s_add_u32 s3, s3, s4")
        a("v_add_u32 v%d, s3, v%d" % (vOAp, tB))
        a("v_lshrrev_b32 v%d, %d, v%d" % (tB, cb, vLANE))
        nrec = 32 >> (6 - cb)
        a("v_mul_u32_u24 v%d, %d, v%d" % (vCD, nrec * 2048, tB))
        a("v_lshl_add_u32 v%d, v%d, 4, v%d" % (vCD, tA, vCD))
        a("v_add_u32 v%d, 4096, v%d" % (vCD2, vCD))
        a("v_mul_u32_u24 v%d, %d, v%d" % (vCMa, nrec * 8, tB))
        a("s_lshl_b32 s3, s%d, 2" % sHG)
        a("s_add_u32 s3, s3, s%d" % sW)
        a("s_mul_i32 s3, s3, %d" % REGION)
        a("s_add_u32 s%d, s%d, s3" % (WSRD, sWS))
        a("s_addc_u32 s%d, s%d, 0" % (WSRD + 1, sWS + 1))
        a("s_and_b32 s%d, s%d, 0xffff" % (WSRD + 1, WSRD + 1))
        a("s_mov_b32 s%d, %d" % (WSRD + 2, REGION))
        a("s_mov_b32 s%d, 0x00020000" % (WSRD + 3))
        a("s_lshl_b32 s%d, s%d, 11" % (sRECO, sSPLIT))
        a("s_mov_b32 s%d, %d" % (sREGO, REG_O))
    a("s_waitcnt vmcnt(%d)" % (9 * (D - qpos)))
    stamp(2)
    full = "row_mask:0xf bank_mask:0xf"
    a("v_cmp_gt_i32 vcc, 0, v%d" % vEI)
    a("v_add_u32 v%d, 1280, v%d" % (vT1, vEI))
    a("v_cndmask_b32 v%d, v%d, v%d, vcc" % (vEI, vEI, vT1))
    a("v_min_u32 v%d, 1279, v%d" % (vEI, vEI))
    a("v_mov_b32_dpp v%d, v%d quad_perm:[0,0,0,0] %s" % (vT1, vEI, full))
    a("v_cmp_eq_u32 vcc, v%d, v%d" % (vEI, vT1))
    a("v_cndmask_b32 v%d, 0, v%d, vcc" % (vEP, vEN))
    a("v_lshlrev_b32 v%d, 17, v%d" % (vEI, vT1))
    a("v_cmp_ne_u32 vcc, 0, v%d" % vEP)
    a("s_and_b32 vcc_lo, vcc_lo, 0xeeeeeeee")
    a("s_and_b32 vcc_hi, vcc_hi, 0xeeeeeeee")
    a("v_mov_b32 v%d, %d" % (vT1, 4 << 5))
    a("v_cndmask_b32 v%d, 0, v%d, vcc" % (vT1, vT1))
    a("v_or_b32 v%d, v%d, v%d" % (vEP, vEP, vT1))
    a("v_or_b32_dpp v%d, v%d, v%d quad_perm:[1,0,3,2] %s" % (vEP, vEP, vEP, full))
    a("v_or_b32_dpp v%d, v%d, v%d quad_perm:[2,3,0,1] %s" % (vEP, vEP, vEP, full))
    a("s_min_u32 s3, s%d, 1" % sQZ)
    a("s_cmp_eq_u32 s3, 0")
    a("s_cbranch_scc1 L_qok")
    for b in range(4):
        lab = a.newlabel("qz")
        a("s_bitcmp0_b32 s%d, %d" % (sQZ, b))
        a("s_cbranch_scc1 %s" % lab)
        for k in range(4):
            a("v_mov_b32 v%d, 0" % (vQ + 4 * b + k))
        a.label(lab)
    a.label("L_qok")
    a("s_cmp_lt_u32 s%d, 4096" % sCE)
    a("s_cbranch_scc1 L_slowstart")
    a("s_mov_b32 exec_lo, 0x11111111")
    a("s_mov_b32 exec_hi, 0")
    a("ds_write_b64 v%d, %s offset:%d" % (vT0, vr(vEI, 2), L_LIST))
    a("s_mov_b64 exec, -1")
    for k in range(DM):
        a("v_readlane_b32 s%d, v%d, %d" % (sDESC + k, vEP, 4 * k))
    stamp(5)
    if lead:
        a("s_cmp_lt_u32 s%d, %d" % (sLK, lead))
        a("s_cbranch_scc0 L_loop")
        a("s_mov_b32 s%d, s%d" % (sCUR, sDESC))
        for k in range(D - 1):
            a("s_mov_b32 s%d, s%d" % (sDESC + k, sDESC + k + 1))
        a("v_readlane_b32 s%d, v%d, %d" % (sDESC + D - 1, vEP, 4 * D))
        a("s_branch L_comp")
    if stamps == 3:
        for j in range(8 * D):
            rem = 9 * D - 1 - (j // 8) * 9 - 1 - (j % 8) + (0)
            a("s_waitcnt vmcnt(%d)" % max(0, (8 * D - 1 - j) + (D - 1 - j // 8)))
            stamp(40 + j) if 40 + j < 60 else None
    if warm:
        pass

    def tail3_code():
        cb = 3 if tail3 == 16 else 2
        nrec = 32 >> (6 - cb)
        X = lambda b, i: vS + 4 * b + i
        for b in range(4):
            a("v_add_f32_dpp v%d, v%d, v%d row_ror:4 %s" % (vL + b, vL + b, vL + b, full))
        for b in range(4):
            a("ds_write_b128 v%d, %s offset:%d" % (vLW0, vr(vO + 8 * b, 4), L_OB + b * 2048))
            a("v_add_f32_dpp v%d, v%d, v%d row_ror:8 %s" % (X(b, 1), vL + b, vL + b, full))
            a("ds_write_b128 v%d, %s offset:%d" % (vLW0, vr(vO + 8 * b + 4, 4), L_OB + b * 2048 + 1024))
            a("v_mov_b32 v%d, v%d" % (X(b, 0), vM + b))
        a("s_mov_b32 exec_lo, 0x00010001")
        a("s_mov_b32 exec_hi, 0x00010001")
        for b in range(4):
            a("ds_write_b64 v%d, %s offset:%d" % (vLW1, vr(X(b, 0), 2), L_ML + b * 32))
        a("s_mov_b64 exec, -1")
        a("s_waitcnt lgkmcnt(0)")
        stamp(7)
        a("s_barrier")
        stamp(8)
        vML = vW + 2
        ORr = lambda i: vO + 8 * i
        vF, vLs, vOs = vS, vS + 1, vS + 4
        for w in range(4):
            a("ds_read_b64 %s, v%d offset:%d" % (vr(vML + 2 * w, 2), vLR1, L_ML + w * 128))
        for w in range(4):
            a("ds_read_b128 %s, v%d offset:%d" % (vr(ORr(w), 4), vLR0, L_OB + w * 8192))
            a("ds_read_b128 %s, v%d offset:%d" % (vr(ORr(w) + 4, 4), vLR0, L_OB + w * 8192 + 1024))
        a("s_waitcnt lgkmcnt(8)")
        Mr = lambda i: vML + 2 * i
        Lr = lambda i: vML + 2 * i + 1
        a("v_max3_f32 v%d, v%d, v%d, v%d" % (vF, Mr(0), Mr(1), Mr(2)))
        a("v_max_f32 v%d, v%d, v%d" % (vF, vF, Mr(3)))
        for i in range(4):
            a("v_sub_f32 v%d, v%d, v%d" % (Mr(i), Mr(i), vF))
        for i in range(4):
            a("v_exp_f32 v%d, v%d" % (Mr(i), Mr(i)))
        a("v_min_u32 v%d, -2, v%d" % (vF, vF))
        a("v_mul_f32 v%d, v%d, v%d" % (vLs, Lr(0), Mr(0)))
        for i in range(1, 4):
            a("v_fmac_f32 v%d, v%d, v%d" % (vLs, Lr(i), Mr(i)))
        for i in range(4):
            a("s_waitcnt lgkmcnt(%d)" % (6 - 2 * i))
            for k in range(4):
                o, r = vr(vOs + 2 * k, 2), vr(ORr(i) + 2 * k, 2)
                if i == 0:
                    a("v_pk_mul_f32 %s, %s, %s op_sel_hi:[1,0]" % (o, r, vr(Mr(i), 2)))
                else:
                    a("v_pk_fma_f32 %s, %s, %s, %s op_sel_hi:[1,0,1]" % (o, r, vr(Mr(i), 2), o))
            if i == 0:
                a("v_min_u32 v%d, -2, v%d" % (vLs, vLs))
                a("s_mov_b32 exec_lo, 0x00010001")
                a("s_mov_b32 exec_hi, 0x00010001")
                a("buffer_store_dwordx2 %s, v%d, s[%d:%d], s%d offen sc1" % (vr(vF, 2), vSTM, WSRD, WSRD + 3, sREGO))
                a("s_mov_b64 exec, -1")
        for k in range(4):
            a("v_min_u32 v%d, -2, v%d" % (vOs + k, vOs + k))
        a("buffer_store_dwordx4 %s, v%d, s[%d:%d], s%d offen sc1" % (vr(vOs, 4), vL16p, WSRD, WSRD + 3, sRECO))
        for k in range(4, 8):
            a("v_min_u32 v%d, -2, v%d" % (vOs + k, vOs + k))
        a("buffer_store_dwordx4 %s, v%d, s[%d:%d], s%d offen offset:1024 sc1" % (vr(vOs + 4, 4), vL16p, WSRD, WSRD + 3, sRECO))
        stamp(9)
        sHX, sIT = 52, 53
        a("s_waitcnt vmcnt(3)")
        a("v_readfirstlane_b32 s3, v%d" % vINI)
        a("v_readfirstlane_b32 s6, v%d" % vPK)
        stamp(10)
        a("s_cmp_lt_u32 s3, %d" % (32 - ncomb))
        a("s_cbranch_scc1 L_exit")
        a("s_sub_u32 s%d, s3, %d" % (sHX, 32 - ncomb))
        a("s_and_b32 s%d, s%d, %d" % (sHX, sHX, ncomb - 1))
        a("s_lshr_b32 s7, s%d, %d" % (sHX, cb))
        a("s_and_b32 s3, s%d, %d" % (sHX, (1 << cb) - 1))
        a("s_lshl_b32 s3, s3, %d" % (7 if cb == 3 else 6))
        a("s_lshl_b32 s4, s7, 10")
        a("s_add_u32 s4, s4, s3")
        a("s_lshr_b32 s5, s3, 8")
        a("s_lshl_b32 s5, s5, 8")
        a("s_add_u32 s5, s5, %d" % REG_O)
        a("s_lshl_b32 s7, s7, 3")
        a("s_add_u32 s7, s7, s3")
        a("s_mov_b32 s%d, 0" % sIT)
        a("s_cmp_eq_u32 s6, 32")
        a("s_cbranch_scc1 L_comb")
        a.label("L_spinC")
        a("global_load_dword v%d, v%d, %s offset:4 sc1" % (vPK, vLA, sp(sDBG)))
        a("s_waitcnt vmcnt(0)")
        a("v_readfirstlane_b32 s6, v%d" % vPK)
        a("s_cmp_lt_u32 s6, 32")
        a("s_cbranch_scc1 L_spinC")
        nld = nrec + nrec // 2
        def regs(sv):
            base = vW + 24 * sv if sv < 2 else vO + 24 * (sv - 2)
            ML = base
            O = lambda i: base + 8 + 4 * i
            return ML, O
        def loads(sv):
            ML, O = regs(sv)
            for t in range(nrec // 2):
                a("buffer_load_dwordx4 %s, v%d, s[%d:%d], s5 offen offset:%d sc1" % (vr(ML + 4 * t, 4), vCMa, WSRD, WSRD + 3, 16 * t))
            for i in range(nrec):
                a("buffer_load_dwordx4 %s, v%d, s[%d:%d], s4 offen offset:%d sc1" % (vr(O(i), 4), vCD if i < 2 else vCD2, WSRD, WSRD + 3, 2048 * (i & 1)))
        cT = [vS + i for i in range(8)]
        def check(sv):
            ML, O = regs(sv)
            rs = [ML + i for i in range(2 * nrec)] + [O(i) + k for i in range(nrec) for k in range(4)]
            lvl = rs
            while len(lvl) > 1:
                nxt = []
                i = 0
                t = 0
                while i < len(lvl):
                    if len(lvl) - i >= 3:
                        a("v_max3_u32 v%d, v%d, v%d, v%d" % (cT[t], lvl[i], lvl[i + 1], lvl[i + 2])); nxt.append(cT[t]); t += 1; i += 3
                    elif len(lvl) - i == 2:
                        a("v_max_u32 v%d, v%d, v%d" % (cT[t], lvl[i], lvl[i + 1])); nxt.append(cT[t]); t += 1; i += 2
                    else:
                        nxt.append(lvl[i]); i += 1
                lvl = nxt
            a("v_cmp_eq_u32 vcc, -1, v%d" % lvl[0])
        def allred(r, t, op):
            if cb == 2:
                a("%s_dpp v%d, v%d, v%d row_ror:4 %s" % (op, r, r, r, full))
            a("%s_dpp v%d, v%d, v%d row_ror:8 %s" % (op, r, r, r, full))
            a("v_mov_b32 v%d, v%d" % (t, r))
            a("v_permlane16_swap_b32 v%d, v%d" % (r, t))
            a("%s v%d, v%d, v%d" % (op, r, r, t))
            a("v_mov_b32 v%d, v%d" % (t, r))
            a("v_permlane32_swap_b32 v%d, v%d" % (r, t))
            a("%s v%d, v%d, v%d" % (op, r, r, t))
        def use(sv):
            ML, O = regs(sv)
            cM, cT0, cL, cT1 = vS + 8, vS + 9, vS + 10, vS + 11
            cW = lambda i: vA + 2 * i
            cAcc = vS + 12
            if nrec == 4:
                a("v_max3_f32 v%d, v%d, v%d, v%d" % (cM, ML, ML + 2, ML + 4))
                a("v_max_f32 v%d, v%d, v%d" % (cM, cM, ML + 6))
            else:
                a("v_max_f32 v%d, v%d, v%d" % (cM, ML, ML + 2))
            allred(cM, cT0, "v_max_f32")
            for i in range(nrec):
                a("v_sub_f32 v%d, v%d, v%d" % (cW(i), ML + 2 * i, cM))
            for i in range(nrec):
                a("v_exp_f32 v%d, v%d" % (cW(i), cW(i)))
            a("v_mul_f32 v%d, v%d, v%d" % (cL, ML + 1, cW(0)))
            for i in range(1, nrec):
                a("v_fmac_f32 v%d, v%d, v%d" % (cL, ML + 2 * i + 1, cW(i)))
            for i in range(nrec):
                for k in range(2):
                    o, r = vr(cAcc + 2 * k, 2), vr(O(i) + 2 * k, 2)
                    if i == 0:
                        a("v_pk_mul_f32 %s, %s, %s op_sel_hi:[1,0]" % (o, r, vr(cW(i), 2)))
                    else:
                        a("v_pk_fma_f32 %s, %s, %s, %s op_sel_hi:[1,0,1]" % (o, r, vr(cW(i), 2), o))
            a("v_permlane32_swap_b32 v%d, v%d" % (cAcc, cAcc + 1))
            a("v_permlane32_swap_b32 v%d, v%d" % (cAcc + 2, cAcc + 3))
            if cb == 2:
                a("v_add_f32_dpp v%d, v%d, v%d row_ror:4 %s" % (cL, cL, cL, full))
            a("v_add_f32 v%d, v%d, v%d" % (cAcc, cAcc, cAcc + 1))
            a("v_add_f32 v%d, v%d, v%d" % (cAcc + 2, cAcc + 2, cAcc + 3))
            a("v_add_f32_dpp v%d, v%d, v%d row_ror:8 %s" % (cL, cL, cL, full))
            a("v_mov_b32 v%d, v%d" % (cT1, cL))
            a("v_permlane16_swap_b32 v%d, v%d" % (cAcc, cAcc + 2))
            a("v_permlane16_swap_b32 v%d, v%d" % (cL, cT1))
            a("v_add_f32 v%d, v%d, v%d" % (cAcc, cAcc, cAcc + 2))
            a("v_add_f32 v%d, v%d, v%d" % (cL, cL, cT1))
            a("v_mov_b32 v%d, v%d" % (cT1, cL))
            if cb == 2:
                a("v_add_f32_dpp v%d, v%d, v%d row_ror:4 %s" % (cAcc, cAcc, cAcc, full))
            a("v_permlane32_swap_b32 v%d, v%d" % (cL, cT1))
            a("v_add_f32_dpp v%d, v%d, v%d row_ror:8 %s" % (cAcc, cAcc, cAcc, full))
            a("v_add_f32 v%d, v%d, v%d" % (cL, cL, cT1))
            a("v_rcp_f32 v%d, v%d" % (cL, cL))
            a("v_add_u32 v%d, s7, v%d" % (cT0, vOAp))
            a("v_mul_f32 v%d, v%d, v%d" % (cAcc, cAcc, cL))
            a("v_cvt_pk_bf16_f32 v%d, v%d, v%d" % (cAcc, cAcc, cAcc))
            m = 0x00ff00ff if cb == 3 else 0x000f000f
            a("s_mov_b32 exec_lo, 0x%08x" % m)
            a("s_mov_b32 exec_hi, 0x%08x" % m)
            a("global_store_short v%d, v%d, %s" % (cT0, cAcc, sp(sOUT)))
            a("s_mov_b64 exec, -1")
        a.label("L_comb")
        if psets == 1:
            a.label("L_poll")
            loads(0)
            a("s_mov_b64 exec, -1")
            a("s_waitcnt vmcnt(0)")
            if stamps == 4:
                a("s_min_u32 s3, s%d, 40" % sIT)
                a("s_add_u32 m0, s3, 16")
                stamp("m0")
            check(0)
            a("s_cbranch_vccz L_comb_use")
            a("s_add_u32 s%d, s%d, 1" % (sIT, sIT))
            a("s_cmp_gt_u32 s%d, 0x400000" % sIT)
            a("s_cbranch_scc1 L_comb_use")
            if pslp:
                a("s_sleep %d" % pslp)
            a("s_mov_b64 exec, vcc")
            a("s_branch L_poll")
            a.label("L_comb_use")
            use(0)
        else:
            assert psets <= 3
            for sv in range(psets):
                loads(sv)
                if sv + 1 < psets and pslp:
                    a("s_sleep %d" % pslp)
            a.label("L_poll")
            for sv in range(psets):
                a("s_waitcnt vmcnt(%d)" % (nld * (psets - 1)))
                check(sv)
                a("s_cbranch_vccz L_use%d" % sv)
                a("s_mov_b64 exec, vcc")
                loads(sv)
                a("s_mov_b64 exec, -1")
            a("s_add_u32 s%d, s%d, 1" % (sIT, sIT))
            a("s_cmp_le_u32 s%d, 0x400000" % sIT)
            a("s_cbranch_scc1 L_poll")
            for sv in range(psets):
                a.label("L_use%d" % sv)
                use(sv)
                a("s_waitcnt vmcnt(0)")
                if sv + 1 < psets:
                    a("s_branch L_exit")

    a.label("L_loop")
    for k in range(1, D):
        a("s_cmp_eq_u32 s%d, %d" % (sSTAGE, k))
        a("s_cbranch_scc1 L_st%d" % k)
    if deep:
        a("s_cmp_ge_u32 s%d, %d" % (sSTAGE, D))
        a("s_cbranch_scc1 L_deepdisp")
    def stage_body(k, D, sid0, fall):
        LEAD = D - 1
        WAITN = 8 * (D - 1) + (D - 2)
        tg = sid0 + k
        kc = (k + D - LEAD) % D
        a.label("L_st%d" % tg)
        a("s_cmp_eq_u32 s%d, 0" % (sDESC + k))
        a("s_cbranch_scc1 L_done")
        a("s_add_u32 s3, s%d, %d" % (sN, D))
        a("s_lshl_b32 s%d, s3, 5" % sP)
        a("s_add_u32 s%d, s%d, s%d" % (sP, sP, sSPLIT))
        a("s_waitcnt vmcnt(%d)" % WAITN)
        if stamps == 2:
            a("s_min_u32 s4, s%d, 43" % sN)
            a("s_add_u32 m0, s4, 16")
            stamp("m0")
        a("v_readfirstlane_b32 s%d, v%d" % (sCL, vCLM + kc))
        a("s_add_u32 s4, s%d, s%d" % (sCL, sDYN0))
        a("s_cmp_lt_u32 s3, s%d" % sSS)
        a("s_cselect_b32 s%d, s%d, s4" % (sP, sP))
        a("s_cmp_ge_u32 s%d, s%d" % (sN, sSTOPN))
        a("s_cselect_b32 s%d, -1, s%d" % (sP, sP))
        a("s_cmp_lt_u32 s%d, s%d" % (sP, sU))
        a("s_cselect_b32 s4, s%d, 0" % sP)
        a("s_cselect_b32 s%d, s%d, 1" % (sEXH, sEXH))
        a("s_cselect_b32 s%d, 0x%x, 0" % (KS + 2, CACHE_BYTES))
        a("s_add_u32 s5, s%d, %d" % (sN, LEAD))
        a("s_cmp_lg_u32 s%d, 0" % sEXH)
        a("s_cselect_b32 s5, s5, -1")
        a("s_min_u32 s%d, s%d, s5" % (sSTOPN, sSTOPN))
        a("s_mov_b32 s%d, s%d" % (VS + 2, KS + 2))
        a("s_lshl_b32 s4, s4, 3")
        a("v_mov_b32 v%d, s4" % vT0)
        a("ds_read_b64 %s, v%d offset:%d" % (vr(vT0, 2), vT0, L_LIST))
        for i in range(16):
            a("v_mov_b64 %s, %s" % (vr(vW + 2 * i, 2), vr(vR + 32 * k + 2 * i, 2)))
        ldum, lgo, lcl, lno = "L_dum%d" % tg, "L_iss%d" % tg, "L_cl%d" % tg, "L_nocl%d" % tg
        a("s_cmp_ge_u32 s%d, s%d" % (sN, sNC))
        a("s_cbranch_scc0 %s" % lno)
        a("s_cmp_lg_u32 s%d, 0" % sEXH)
        a("s_cbranch_scc1 %s" % ldum)
        a("s_cmp_lg_u32 s%d, 0" % sFOK)
        a("s_cbranch_scc1 %s" % lcl)
        a("s_lshr_b32 s4, s%d, 16" % sCL)
        a("s_cmp_lg_u32 s4, 0")
        a("s_cbranch_scc0 L_elect")
        a("s_mov_b32 s%d, 1" % sFOK)
        a.label(lcl)
        a("s_mov_b64 exec, 1")
        a("global_atomic_add v%d, v%d, v%d, %s sc0" % (vCLM + k, vCA, vONE, sp(sWS)))
        a("s_mov_b64 exec, -1")
        a("s_branch %s" % lgo)
        a.label(lno)
        a("s_cmp_eq_u32 s%d, s%d" % (sN, sNF))
        a("s_cbranch_scc0 %s" % ldum)
        a("s_cmp_eq_u32 s%d, 0x1000" % sU)
        a("s_cbranch_scc1 L_getconst")
        a("s_mov_b64 exec, 1")
        a("global_load_dword v%d, v%d, %s sc1" % (vCLM + k, vLA, sp(sDBG)))
        a("s_mov_b64 exec, -1")
        a("s_branch %s" % lgo)
        a.label(ldum)
        dummyC(k)
        a.label(lgo)
        if thr or thr7:
            def nops(n):
                while n > 0:
                    m = min(n, 4)
                    a("s_nop %d" % (4 * m - 1))
                    n -= m
            lo, hi = min(thr, thr7), max(thr, thr7)
            nops(lo)
            if hi > lo:
                a("s_cmp_eq_u32 s%d, 7" % sHG)
                a("s_cbranch_scc%d L_nothr%d" % (1 if thr > thr7 else 0, tg))
                nops(hi - lo)
                a.label("L_nothr%d" % tg)
        a("s_waitcnt lgkmcnt(0)")
        a("v_readfirstlane_b32 s%d, v%d" % (sOFF, vT0))
        a("v_readfirstlane_b32 s%d, v%d" % (sNEW, vT1))
        a("s_cmp_lg_u32 s%d, 0" % (KS + 2))
        a("s_cselect_b32 s%d, s%d, 0" % (sNEW, sNEW))
        a("s_cselect_b32 s%d, s%d, 0" % (sOFF, sOFF))
        issue(k)
        a("s_mov_b32 s%d, s%d" % (sCUR, sDESC + k))
        a("s_mov_b32 s%d, s%d" % (sDESC + k, sNEW))
        a("s_mov_b32 s%d, %d" % (sSTAGE, sid0 + (k + 1) % D))
        if not fall:
            a("s_branch L_comp")
    for k in range(D):
        stage_body(k, D, 0, k == D - 1)
    a.label("L_comp")
    if stamps == 1:
        a("s_min_u32 s3, s%d, 47" % sN)
        a("s_add_u32 m0, s3, 16")
        stamp("m0")
    a("s_bfe_u32 s%d, s%d, 0x30005" % (sTYPE, sCUR))
    for b in range(4):
        a("s_bfe_u32 s%d, s%d, 0x%x" % (sNV + b, sCUR, (5 << 16) | (8 * b)))
    a("s_cmp_eq_u32 s%d, 4" % sTYPE)
    a("s_cbranch_scc1 L_c4")
    for b in range(1, 4):
        a("s_cmp_eq_u32 s%d, %d" % (sTYPE, b))
        a("s_cbranch_scc1 L_c%d" % b)

    K = lambda i, k: vW + 4 * i + k
    V = lambda i, k: vW + 16 + 4 * i + k

    def compute(qs):
        nq = len(qs)
        S = lambda j, i: vS + 4 * j + i
        A = lambda j: vA + 2 * j
        P = lambda j: vA + 2 * j + 1
        PB = lambda j: vPB + 2 * j
        T = lambda j: vPB + 2 * j + 1
        msk = lambda j: sp(52 + 2 * j)
        for j, b in enumerate(qs):
            a("v_cmp_gt_u32 %s, s%d, v%d" % (msk(j), sNV + b, vTOK))
        for k in range(4):
            for j, b in enumerate(qs):
                for i in range(4):
                    if k == 0:
                        a("v_dot2_f32_bf16 v%d, v%d, v%d, 0" % (S(j, i), K(i, k), vQ + 4 * b + k))
                    else:
                        a("v_dot2c_f32_bf16 v%d, v%d, v%d" % (S(j, i), K(i, k), vQ + 4 * b + k))

        def unpack(i, dst):
            for k in range(4):
                a("v_lshlrev_b32 v%d, 16, v%d" % (dst + 2 * k, V(i, k)))
                a("v_and_b32 v%d, s%d, v%d" % (dst + 2 * k + 1, sHI, V(i, k)))
        unpack(0, vU)
        for j in range(nq):
            a("v_add_f32_dpp v%d, v%d, v%d row_ror:8 row_mask:0xf bank_mask:0x3" % (S(j, 0), S(j, 0), S(j, 0)))
            a("v_add_f32_dpp v%d, v%d, v%d row_ror:8 row_mask:0xf bank_mask:0x3" % (S(j, 1), S(j, 1), S(j, 1)))
            a("v_add_f32_dpp v%d, v%d, v%d row_ror:8 row_mask:0xf bank_mask:0xc" % (S(j, 0), S(j, 2), S(j, 2)))
            a("v_add_f32_dpp v%d, v%d, v%d row_ror:8 row_mask:0xf bank_mask:0xc" % (S(j, 1), S(j, 3), S(j, 3)))
        unpack(1, vU + 8)
        for j in range(nq):
            a("v_add_f32_dpp v%d, v%d, v%d row_half_mirror row_mask:0xf bank_mask:0x5" % (S(j, 0), S(j, 0), S(j, 0)))
        for j in range(nq):
            a("v_add_f32_dpp v%d, v%d, v%d row_half_mirror row_mask:0xf bank_mask:0xa" % (S(j, 0), S(j, 1), S(j, 1)))
        for j in range(nq):
            a("v_add_f32_dpp v%d, v%d, v%d quad_perm:[1,0,3,2] %s" % (S(j, 0), S(j, 0), S(j, 0), full))
        for j in range(nq):
            a("v_add_f32_dpp v%d, v%d, v%d quad_perm:[2,3,0,1] %s" % (S(j, 0), S(j, 0), S(j, 0), full))
        for j in range(nq):
            a("v_mul_f32 v%d, s%d, v%d" % (S(j, 0), sC, S(j, 0)))
        for j in range(nq):
            a("v_cndmask_b32 v%d, v%d, v%d, %s" % (S(j, 0), vNEG, S(j, 0), msk(j)))
        for j, b in enumerate(qs):
            a("v_max_f32 v%d, v%d, v%d" % (T(j), S(j, 0), vM + b))
        for j in range(nq):
            a("v_max_f32_dpp v%d, v%d, v%d row_ror:4 %s" % (T(j), T(j), T(j), full))
        for j in range(nq):
            a("v_max_f32_dpp v%d, v%d, v%d row_ror:8 %s" % (T(j), T(j), T(j), full))
        for j, b in enumerate(qs):
            a("v_sub_f32 v%d, v%d, v%d" % (A(j), vM + b, T(j)))
            a("v_sub_f32 v%d, v%d, v%d" % (P(j), S(j, 0), T(j)))
        for j, b in enumerate(qs):
            a("v_exp_f32 v%d, v%d" % (A(j), A(j)))
            a("v_exp_f32 v%d, v%d" % (P(j), P(j)))
        for j, b in enumerate(qs):
            a("v_mov_b32 v%d, v%d" % (vM + b, T(j)))
        for j, b in enumerate(qs):
            a("v_fma_f32 v%d, v%d, v%d, v%d" % (vL + b, vL + b, A(j), P(j)))
        for j, b in enumerate(qs):
            for k in range(4):
                o = vO + 8 * b + 2 * k
                a("v_pk_mul_f32 %s, %s, %s op_sel_hi:[1,0]" % (vr(o, 2), vr(o, 2), vr(A(j), 2)))
        for i in range(4):
            u = vU + 8 * (i & 1)
            for j in range(nq):
                a("v_mov_b32_dpp v%d, v%d row_newbcast:%d %s" % (PB(j), P(j), 4 * i, full))
            for j, b in enumerate(qs):
                for k in range(4):
                    o = vO + 8 * b + 2 * k
                    a("v_pk_fma_f32 %s, %s, %s, %s op_sel_hi:[1,0,1]" % (vr(o, 2), vr(u + 2 * k, 2), vr(PB(j), 2), vr(o, 2)))
            if i + 2 < 4:
                unpack(i + 2, u)

    for b in range(4):
        a.label("L_c%d" % b)
        compute([b])
        a("s_branch L_next")
    a.label("L_c4")
    compute([0, 1, 2, 3])
    a.label("L_next")
    a("s_add_u32 s%d, s%d, 1" % (sN, sN))
    a("s_branch L_loop")

    a.label("L_done")
    stamp(6)
    if hst == 1:
        a("s_memrealtime s[98:99]")
    a("s_cmp_lg_u32 s%d, 0" % sFOK)
    a("s_cbranch_scc0 L_elect")
    if warm:
        a.raw("    ; WARM_BEGIN")
    a("s_mov_b64 exec, 1")
    a("global_atomic_add v%d, v%d, v%d, %s offset:1024 sc0" % (vINI, vCA, vONE, sp(sWS)))
    if tail2:
        a("global_load_dword v%d, v%d, %s offset:4 sc1" % (vPK, vLA, sp(sDBG)))
    if tail3 and tlbw:
        a("buffer_load_dword v%d, v%d, s[%d:%d], s%d offen sc1" % (vA, vL16p, WSRD, WSRD + 3, sRECO))
        a("global_load_dword v%d, v%d, %s" % (vA + 1, vOAp, sp(sOUT)))
    a("s_mov_b64 exec, -1")
    if not tail3:
        X = lambda b, i: vS + 4 * b + i
        for b in range(4):
            a("v_add_f32_dpp v%d, v%d, v%d row_ror:4 %s" % (vL + b, vL + b, vL + b, full))
        a("v_lshlrev_b32 v%d, 4, v%d" % (vW, vLANE))
        a("s_lshl_b32 s3, s%d, 13" % sW)
        a("v_add_u32 v%d, s3, v%d" % (vT0, vW))
        for b in range(4):
            a("v_add_f32_dpp v%d, v%d, v%d row_ror:8 %s" % (X(b, 1), vL + b, vL + b, full))
        for b in range(4):
            a("ds_write_b128 v%d, %s offset:%d" % (vT0, vr(vO + 8 * b, 4), L_OB + b * 2048))
            a("ds_write_b128 v%d, %s offset:%d" % (vT0, vr(vO + 8 * b + 4, 4), L_OB + b * 2048 + 1024))
        for b in range(4):
            a("v_mov_b32 v%d, v%d" % (X(b, 0), vM + b))
        a("v_lshrrev_b32 v%d, 4, v%d" % (vW + 1, vLANE))
        a("v_lshlrev_b32 v%d, 3, v%d" % (vW + 1, vW + 1))
        a("s_lshl_b32 s3, s%d, 7" % sW)
        a("v_add_u32 v%d, s3, v%d" % (vT1, vW + 1))
        a("s_mov_b32 exec_lo, 0x00010001")
        a("s_mov_b32 exec_hi, 0x00010001")
        for b in range(4):
            a("ds_write_b64 v%d, %s offset:%d" % (vT1, vr(X(b, 0), 2), L_ML + b * 32))
        a("s_mov_b64 exec, -1")
        a("s_waitcnt lgkmcnt(0)")
        stamp(7)
        a("s_barrier")
        stamp(8)
        if hst == 2:
            a("s_memrealtime s[98:99]")

        vA16, vR8 = vW, vW + 1
        vML = vW + 2
        ORr = lambda i: vO + 8 * i
        vF, vLs, vOs = vS, vS + 1, vS + 4
        a("s_lshl_b32 s3, s%d, 11" % sW)
        a("v_add_u32 v%d, s3, v%d" % (vT0, vA16))
        a("s_lshl_b32 s3, s%d, 5" % sW)
        a("v_add_u32 v%d, s3, v%d" % (vT1, vR8))
        for w in range(4):
            a("ds_read_b64 %s, v%d offset:%d" % (vr(vML + 2 * w, 2), vT1, L_ML + w * 128))
        for w in range(4):
            a("ds_read_b128 %s, v%d offset:%d" % (vr(ORr(w), 4), vT0, L_OB + w * 8192))
            a("ds_read_b128 %s, v%d offset:%d" % (vr(ORr(w) + 4, 4), vT0, L_OB + w * 8192 + 1024))
        a("s_lshl_b32 s3, s%d, 2" % sHG)
        a("s_add_u32 s3, s3, s%d" % sW)
        a("s_mul_i32 s3, s3, %d" % REGION)
        a("s_add_u32 s%d, s%d, s3" % (WSRD, sWS))
        a("s_addc_u32 s%d, s%d, 0" % (WSRD + 1, sWS + 1))
        a("s_and_b32 s%d, s%d, 0xffff" % (WSRD + 1, WSRD + 1))
        a("s_mov_b32 s%d, %d" % (WSRD + 2, REGION))
        a("s_mov_b32 s%d, 0x00020000" % (WSRD + 3))
        a("s_lshl_b32 s%d, s%d, 11" % (sOFF, sSPLIT))
        a("v_lshlrev_b32 v%d, 5, v%d" % (vA, vR8))
        a("s_lshl_b32 s3, s%d, 3" % sSPLIT)
        a("v_add_u32 v%d, s3, v%d" % (vA, vA))
        a("s_mov_b32 s4, %d" % REG_O)
        a("s_waitcnt lgkmcnt(8)")
        Mr = lambda i: vML + 2 * i
        Lr = lambda i: vML + 2 * i + 1
        a("v_max3_f32 v%d, v%d, v%d, v%d" % (vF, Mr(0), Mr(1), Mr(2)))
        a("v_max_f32 v%d, v%d, v%d" % (vF, vF, Mr(3)))
        for i in range(4):
            a("v_sub_f32 v%d, v%d, v%d" % (Mr(i), Mr(i), vF))
        for i in range(4):
            a("v_exp_f32 v%d, v%d" % (Mr(i), Mr(i)))
        a("v_mul_f32 v%d, v%d, v%d" % (vLs, Lr(0), Mr(0)))
        for i in range(1, 4):
            a("v_fmac_f32 v%d, v%d, v%d" % (vLs, Lr(i), Mr(i)))
        a("v_min_u32 v%d, -2, v%d" % (vF, vF))
        a("v_min_u32 v%d, -2, v%d" % (vLs, vLs))
        a("s_mov_b32 exec_lo, 0x00010001")
        a("s_mov_b32 exec_hi, 0x00010001")
        a("buffer_store_dwordx2 %s, v%d, s[%d:%d], s4 offen sc1" % (vr(vF, 2), vA, WSRD, WSRD + 3))
        a("s_mov_b64 exec, -1")
        a("s_waitcnt lgkmcnt(0)")
        for k in range(8):
            a("v_mul_f32 v%d, v%d, v%d" % (vOs + k, ORr(0) + k, Mr(0)))
        for i in range(1, 4):
            for k in range(8):
                a("v_fmac_f32 v%d, v%d, v%d" % (vOs + k, ORr(i) + k, Mr(i)))
        for k in range(8):
            a("v_min_u32 v%d, -2, v%d" % (vOs + k, vOs + k))
        a("buffer_store_dwordx4 %s, v%d, s[%d:%d], s%d offen sc1" % (vr(vOs, 4), vA16, WSRD, WSRD + 3, sOFF))
        a("buffer_store_dwordx4 %s, v%d, s[%d:%d], s%d offen offset:1024 sc1" % (vr(vOs + 4, 4), vA16, WSRD, WSRD + 3, sOFF))
        stamp(9)
        vAR, sAR, aoff = vCA, sWS, 1024
        vCA0, vCM = vA, vA + 1
        a("v_lshrrev_b32 v%d, 4, v%d" % (vCA0, vLANE))
        a("v_lshlrev_b32 v%d, 10, v%d" % (vCA0, vCA0))
        a("v_and_b32 v%d, 15, v%d" % (vCM, vLANE))
        a("v_lshl_add_u32 v%d, v%d, 4, v%d" % (vCA0, vCM, vCA0))
        a("v_lshrrev_b32 v%d, 5, v%d" % (vA + 2, vLANE))
        a("v_lshl_add_u32 v%d, v%d, 1, v%d" % (vCM, vCM, vA + 2))
        a("v_lshlrev_b32 v%d, 3, v%d" % (vCM, vCM))
        sHX = 52
        sIT = 53
        a("s_waitcnt vmcnt(3)")
        a("v_readfirstlane_b32 s3, v%d" % vINI)
        stamp(10)
        a("s_cmp_lt_u32 s3, %d" % (32 - ncomb))
        a("s_cbranch_scc1 L_exit")
        a("s_sub_u32 s%d, s3, %d" % (sHX, 32 - ncomb))
        a("s_mov_b32 s%d, 0" % sIT)
        if tail2:
            a("v_readfirstlane_b32 s3, v%d" % vPK)
            a("s_cmp_eq_u32 s3, 32")
            a("s_cbranch_scc1 L_comb")
            a.label("L_spinC")
            a("global_load_dword v%d, v%d, %s offset:4 sc1" % (vPK, vLA, sp(sDBG)))
            a("s_waitcnt vmcnt(0)")
            a("v_readfirstlane_b32 s3, v%d" % vPK)
            a("s_cmp_lt_u32 s3, 32")
            a("s_cbranch_scc1 L_spinC")
        else:
            a("s_cmp_eq_u32 s3, 31")
            a("s_cbranch_scc1 L_comb")
            a.label("L_spinC")
            a("global_load_dword v%d, v%d, %s offset:%d sc1" % (vPK, vAR, sp(sAR), aoff))
            a("s_waitcnt vmcnt(0)")
            a("v_readfirstlane_b32 s3, v%d" % vPK)
            a("s_cmp_lt_u32 s3, 32")
            a("s_cbranch_scc1 L_spinC")
        a.label("L_comb")
        assert ncomb == 4
        cML = vS
        cO = lambda i: vW + 4 * i if i < 12 else vO + 4 * (i - 12)
        a("s_lshl_b32 s4, s%d, 8" % sHX)
        a("s_add_u32 s5, s4, %d" % REG_O)
        a("buffer_load_dwordx2 %s, v%d, s[%d:%d], s5 offen sc1" % (vr(cML, 2), vCM, WSRD, WSRD + 3))
        for i in range(16):
            a("buffer_load_dwordx4 %s, v%d, s[%d:%d], s4 offen sc1" % (vr(cO(i), 4), vCA0, WSRD, WSRD + 3))
            if i < 15:
                a("s_add_u32 s4, s4, 4096")
        a.label("L_comb_use")
        a("s_lshl_b32 s3, s%d, 2" % sHG)
        a("s_add_u32 s3, s3, s%d" % sHX)
        a("s_lshl_b32 s3, s3, 8")
        a("s_lshl_b32 s4, s%d, 13" % sW)
        a("s_add_u32 s3, s3, s4")
        vOA = vA + 3
        a("v_and_b32 v%d, 15, v%d" % (vOA, vLANE))
        a("v_lshlrev_b32 v%d, 4, v%d" % (vOA, vOA))
        a("v_bfe_u32 v%d, v%d, 4, 1" % (vA + 4, vLANE))
        a("v_lshl_add_u32 v%d, v%d, 3, v%d" % (vOA, vA + 4, vOA))
        a("v_add_u32 v%d, s3, v%d" % (vOA, vOA))
        cM, cW, cL, cT = vS + 2, vS + 3, vS + 4, vS + 5
        cAcc = vS + 8
        cPB = vPB
        cV = vS + 6
        a("s_waitcnt vmcnt(16)")
        a("v_max_u32 v%d, v%d, v%d" % (cV, cML, cML + 1))
        a("v_max_f32_dpp v%d, v%d, v%d row_ror:1 %s" % (cM, cML, cML, full))
        for r in (2, 4, 8):
            a("v_max_f32_dpp v%d, v%d, v%d row_ror:%d %s" % (cM, cM, cM, r, full))
        a("v_mov_b32 v%d, v%d" % (cT, cM))
        a("v_permlane32_swap_b32 v%d, v%d" % (cM, cT))
        a("v_max_f32 v%d, v%d, v%d" % (cM, cM, cT))
        a("v_sub_f32 v%d, v%d, v%d" % (cW, cML, cM))
        a("v_exp_f32 v%d, v%d" % (cW, cW))
        a("v_mul_f32 v%d, v%d, v%d" % (cL, cML + 1, cW))
        for r in (1, 2, 4, 8):
            a("v_add_f32_dpp v%d, v%d, v%d row_ror:%d %s" % (cL, cL, cL, r, full))
        a("v_mov_b32 v%d, v%d" % (cT, cL))
        a("v_permlane32_swap_b32 v%d, v%d" % (cL, cT))
        a("v_add_f32 v%d, v%d, v%d" % (cL, cL, cT))
        a("v_rcp_f32 v%d, v%d" % (cL, cL))
        for i in range(16):
            pb = cPB + 2 * (i & 1)
            a("v_mov_b32_dpp v%d, v%d row_newbcast:%d %s" % (pb, cW, i, full))
            a("s_waitcnt vmcnt(%d)" % (15 - i))
            a("v_max3_u32 v%d, v%d, v%d, v%d" % (cV, cV, cO(i), cO(i) + 1))
            a("v_max3_u32 v%d, v%d, v%d, v%d" % (cV, cV, cO(i) + 2, cO(i) + 3))
            for k in range(2):
                if i == 0:
                    a("v_pk_mul_f32 %s, %s, %s op_sel_hi:[1,0]" % (vr(cAcc + 2 * k, 2), vr(cO(i) + 2 * k, 2), vr(pb, 2)))
                else:
                    a("v_pk_fma_f32 %s, %s, %s, %s op_sel_hi:[1,0,1]" % (vr(cAcc + 2 * k, 2), vr(cO(i) + 2 * k, 2), vr(pb, 2), vr(cAcc + 2 * k, 2)))
        a("v_cmp_eq_u32 vcc, -1, v%d" % cV)
        if tail2 >= 2:
            a("s_cbranch_vccnz L_sel")
        else:
            a("s_add_u32 s%d, s%d, 1" % (sIT, sIT))
            a("s_cmp_gt_u32 s%d, 0x100000" % sIT)
            a("s_cbranch_scc1 L_combfin")
            a("s_cbranch_vccnz L_comb")
        a.label("L_combfin")
        for k in range(4):
            a("v_mov_b32 v%d, v%d" % (vS + 12 + k, cAcc + k))
        for k in range(4):
            a("v_permlane32_swap_b32 v%d, v%d" % (cAcc + k, vS + 12 + k))
        for k in range(4):
            a("v_add_f32 v%d, v%d, v%d" % (cAcc + k, cAcc + k, vS + 12 + k))
        for k in range(4):
            a("v_mul_f32 v%d, v%d, v%d" % (cAcc + k, cAcc + k, cL))
        a("v_cvt_pk_bf16_f32 v%d, v%d, v%d" % (cAcc, cAcc, cAcc + 1))
        a("v_cvt_pk_bf16_f32 v%d, v%d, v%d" % (cAcc + 1, cAcc + 2, cAcc + 3))
        a("s_mov_b32 exec_lo, -1")
        a("s_mov_b32 exec_hi, 0")
        a("global_store_dwordx2 v%d, %s, %s" % (vOA, vr(cAcc, 2), sp(sOUT)))
        a("s_mov_b64 exec, -1")
    else:
        tail3_code()
    if warm:
        a.raw("    ; WARM_END")
    if hst == 2:
        a("s_memrealtime s[4:5]")
        a("s_waitcnt lgkmcnt(0)")
        a("v_mov_b32 v%d, s4" % vT0)
        a("v_mov_b32 v%d, 16" % vT1)
        a("s_mov_b64 exec, 1")
        a("global_atomic_umax v%d, v%d, %s" % (vT1, vT0, sp(sDBG)))
    a.label("L_exit")
    if hst == 2:
        a("s_cmp_eq_u32 s%d, 0" % sW)
        a("s_cbranch_scc0 L_exit2")
        a("s_waitcnt lgkmcnt(0)")
        a("v_mov_b32 v%d, s98" % vT0)
        a("v_mov_b32 v%d, 12" % vT1)
        a("s_mov_b64 exec, 1")
        a("global_atomic_umax v%d, v%d, %s" % (vT1, vT0, sp(sDBG)))
    if hst == 1:
        a("s_memrealtime s[4:5]")
        a("s_not_b32 s3, s100")
        a("v_mov_b32 v%d, s3" % vT0)
        a("s_waitcnt lgkmcnt(0)")
        a("v_writelane_b32 v%d, s98, 1" % vT0)
        a("v_writelane_b32 v%d, s4, 2" % vT0)
        a("v_lshlrev_b32 v%d, 2, v%d" % (vT1, vLANE))
        a("s_mov_b64 exec, 7")
        a("global_atomic_umax v%d, v%d, %s offset:8" % (vT1, vT0, sp(sDBG)))

    def stamps_out(slot_expr):
        stamp(11)
        a("v_writelane_b32 v%d, s%d, 12" % (vST, sN))
        a("s_getreg_b32 s3, hwreg(HW_REG_XCC_ID)")
        a("v_writelane_b32 v%d, s3, 14" % vST)
        a("s_getreg_b32 s3, hwreg(HW_REG_HW_ID)")
        a("v_writelane_b32 v%d, s3, 15" % vST)
        slot_expr()
        a("s_lshl_b32 s3, s3, 8")
        a("s_add_u32 s3, s3, 0x8000000")
        a("v_lshlrev_b32 v%d, 2, v%d" % (vT0, vLANE))
        a("v_add_u32 v%d, s3, v%d" % (vT0, vT0))
        a("global_store_dword v%d, v%d, %s" % (vT0, vST, sp(sWS)))
    if stamps:
        def sl():
            a("s_lshl_b32 s3, s2, 2")
            a("s_add_u32 s3, s3, s%d" % sW)
        stamps_out(sl)
    a.label("L_exit2")
    a("s_endpgm")

    if tail2 >= 2:
        sMASK = 54
        def chk(i):
            if i < 16:
                a("v_max3_u32 v%d, v%d, v%d, v%d" % (cT, cO(i), cO(i) + 1, cO(i) + 2))
                a("v_max_u32 v%d, v%d, v%d" % (cT, cT, cO(i) + 3))
            else:
                a("v_max_u32 v%d, v%d, v%d" % (cT, cML, cML + 1))
            a("v_cmp_eq_u32 vcc, -1, v%d" % cT)
        a.label("L_sel")
        a("s_mov_b32 s%d, 0" % sMASK)
        for i in range(17):
            chk(i)
            a("s_cmp_lg_u64 vcc, 0")
            a("s_cselect_b32 s3, 0x%x, 0" % (1 << i))
            a("s_or_b32 s%d, s%d, s3" % (sMASK, sMASK))
        a("s_lshl_b32 s5, s%d, 8" % sHX)
        a.label("L_poll")
        def each(fn, tag):
            for g in range(5):
                idxs = list(range(4 * g, min(4 * g + 4, 17)))
                lg = "L_%s_g%d" % (tag, g)
                if len(idxs) > 1:
                    a("s_and_b32 s3, s%d, 0x%x" % (sMASK, 0xf << (4 * g)))
                    a("s_cbranch_scc0 %s" % lg)
                for i in idxs:
                    li = "L_%s_%d" % (tag, i)
                    a("s_bitcmp1_b32 s%d, %d" % (sMASK, i))
                    a("s_cbranch_scc0 %s" % li)
                    fn(i, li)
                    a.label(li)
                if len(idxs) > 1:
                    a.label(lg)
        def ld1(i, li):
            if i < 16:
                a("s_add_u32 s4, s5, %d" % (i * 4096))
                a("buffer_load_dwordx4 %s, v%d, s[%d:%d], s4 offen sc1" % (vr(cO(i), 4), vCA0, WSRD, WSRD + 3))
            else:
                a("s_add_u32 s4, s5, %d" % REG_O)
                a("buffer_load_dwordx2 %s, v%d, s[%d:%d], s4 offen sc1" % (vr(cML, 2), vCM, WSRD, WSRD + 3))
        each(ld1, "pl")
        a("s_waitcnt vmcnt(0)")
        def ck1(i, li):
            chk(i)
            a("s_cbranch_vccnz %s" % li)
            a("s_bitset0_b32 s%d, %d" % (sMASK, i))
        each(ck1, "pc")
        a("s_add_u32 s%d, s%d, 1" % (sIT, sIT))
        a("s_cmp_gt_u32 s%d, 0x400000" % sIT)
        a("s_cbranch_scc1 L_combfin")
        a("s_cmp_lg_u32 s%d, 0" % sMASK)
        a("s_cbranch_scc1 L_poll")
        a("s_branch L_comb_use")

    if deep:
        a.label("L_deepdisp")
        for k in range(1, DM):
            a("s_cmp_eq_u32 s%d, %d" % (sSTAGE, D + k))
            a("s_cbranch_scc1 L_st%d" % (D + k))
        for k in range(DM):
            stage_body(k, DM, D, False)

    a.label("L_slowstart")
    get_consts("S", DM + 2 * (DM - 1))
    a("v_lshlrev_b32 v%d, 5, v%d" % (vT0, vLANE))
    a("v_add_u32 v%d, s%d, v%d" % (vT0, sSPLIT, vT0))
    a("v_lshlrev_b32 v%d, 3, v%d" % (vT0, vT0))
    a("ds_read_b64 %s, v%d offset:%d" % (vr(vS + 12, 2), vT0, L_LIST))
    a("s_waitcnt vmcnt(0) lgkmcnt(0)")
    for k in range(DM):
        if k == D:
            a("s_cmp_lt_u32 s%d, %d" % (sLK, deep))
            a("s_cbranch_scc0 L_loop")
        a("v_readlane_b32 s%d, v%d, %d" % (sOFF, vS + 12, k))
        a("v_readlane_b32 s%d, v%d, %d" % (sDESC + k, vS + 13, k))
        a("s_add_u32 s3, s%d, %d" % (sSPLIT, 32 * k))
        a("s_cmp_lt_u32 s3, s%d" % sU)
        a("s_cselect_b32 s%d, 0x%x, 0" % (KS + 2, CACHE_BYTES))
        a("s_cselect_b32 s%d, s%d, 0" % (sDESC + k, sDESC + k))
        a("s_cselect_b32 s%d, s%d, 0" % (sOFF, sOFF))
        a("s_mov_b32 s%d, s%d" % (VS + 2, KS + 2))
        dummyC(k)
        issue(k)
    a("s_branch L_loop")

    a.label("L_getconst")
    get_consts("F", (NL - 1 + DM + 2 * (DM - 1)) if deep else (NL + D + 2 * LEAD))
    stamp(4)
    a("s_branch L_loop")

    e0, e1, e2 = vU, vU + 1, vU + 2
    a.label("L_elect")
    a("s_waitcnt lgkmcnt(0)")
    a("s_mov_b32 s5, 0")
    a.label("L_el_poll")
    a("s_mov_b64 exec, 1")
    a("global_load_dword v%d, v%d, %s sc1" % (e0, vLA, sp(sDBG)))
    a("s_mov_b64 exec, -1")
    a("s_waitcnt vmcnt(0)")
    a("v_readfirstlane_b32 s4, v%d" % e0)
    a("s_lshr_b32 s4, s4, 16")
    a("s_cmp_lg_u32 s4, 0")
    a("s_cbranch_scc1 L_el_ret")
    a("s_add_u32 s5, s5, 1")
    a("s_cmp_lg_u32 s5, 12")
    a("s_cbranch_scc1 L_el_poll")
    a("s_mov_b64 exec, 1")
    a("global_atomic_add v%d, v%d, v%d, %s sc0" % (e0, vLA, vONE, sp(sDBG)))
    a("s_mov_b64 exec, -1")
    a("s_waitcnt vmcnt(0)")
    a("v_readfirstlane_b32 s4, v%d" % e0)
    a("s_and_b32 s4, s4, 0xffff")
    a("s_cmp_lg_u32 s4, 0")
    a("s_cbranch_scc1 L_el_poll")
    a("s_lshl_b32 s4, s%d, 8" % sW)
    a("v_lshlrev_b32 v%d, 8, v%d" % (e1, vLANE))
    a("v_add_u32 v%d, v%d, v%d" % (e1, e1, vCA))
    a("v_subrev_u32 v%d, s4, v%d" % (e1, e1))
    a("v_mov_b32 v%d, 0" % e2)
    a("s_mov_b64 exec, 0xff")
    a("global_atomic_swap v%d, v%d, v%d, %s sc0" % (e0, e1, e2, sp(sWS)))
    a("s_waitcnt vmcnt(0)")
    a("v_mov_b32 v%d, 0x10000" % e2)
    a("s_mov_b64 exec, 1")
    a("global_atomic_add v%d, v%d, %s" % (vLA, e2, sp(sDBG)))
    a("s_mov_b64 exec, -1")
    a("s_waitcnt vmcnt(0)")
    a.label("L_el_ret")
    a("s_mov_b32 s%d, 1" % sFOK)
    a("s_branch L_loop")

    a.label("L_builder")
    E = lambda r, b: 32 + 2 * (4 * r + b)
    bJ = 96
    bNV = 100
    bL16 = 104
    bA, bB, bD = 105, 106, 108
    bT0, bT1 = 113, 114
    sVm = {0: 52, 1: 54, 2: 56, 3: 58}
    sLd = {0: 52, 1: 60, 2: 62, 3: 64}
    sE = {(0, 1): 66, (0, 2): 68, (0, 3): 70, (1, 2): 72, (1, 3): 74, (2, 3): 76}
    sM = {0: 78, 1: 80, 2: 82}
    sT = 84
    sCNT = 86
    ctx_load()
    if bdelay:
        a("s_mov_b32 s3, %d" % bdelay)
        a.label("L_b_delay0")
        a("s_sub_u32 s3, s3, 1")
        a("s_cmp_lg_u32 s3, 0")
        a("s_cbranch_scc1 L_b_delay0")
    a("v_lshlrev_b32 v%d, 2, v%d" % (bJ, vLANE))
    for b in range(1, 4):
        a("v_add_u32 v%d, %d, v%d" % (bJ + b, b * 2048, bJ))
    for r in range(8):
        for b in range(4):
            a("global_load_dword v%d, v%d, %s offset:%d" % (E(r, b), bJ + b, sp(sBT), r * 256))
    a("s_lshl_b32 s3, s%d, 2" % sHG)
    a("s_mul_i32 s3, s3, %d" % REGION)
    a("s_lshl_b32 s4, s%d, 11" % sSPLIT)
    a("s_add_u32 s4, s4, s3")
    a("v_lshlrev_b32 v%d, 4, v%d" % (bL16, vLANE))
    a("v_add_u32 v%d, s4, v%d" % (bA, bL16))
    a("v_lshrrev_b32 v%d, 2, v%d" % (bB, vLANE))
    a("v_mul_u32_u24 v%d, %d, v%d" % (bB, REGION, bB))
    a("v_and_b32 v%d, 3, v%d" % (bT0, vLANE))
    a("v_lshl_add_u32 v%d, v%d, 8, v%d" % (bB, bT0, bB))
    a("s_lshl_b32 s4, s%d, 3" % sSPLIT)
    a("s_add_u32 s4, s4, s3")
    a("s_add_u32 s4, s4, %d" % REG_O)
    a("v_add_u32 v%d, s4, v%d" % (bB, bB))
    for k in range(4):
        a("v_mov_b32 v%d, -1" % (bD + k))
    def b_prefill():
        for b in range(4):
            a("global_store_dwordx4 v%d, %s, %s sc1" % (bA, vr(bD, 4), sp(sWS)))
            a("global_store_dwordx4 v%d, %s, %s offset:1024 sc1" % (bA, vr(bD, 4), sp(sWS)))
            if b < 3:
                a("v_add_u32 v%d, %d, v%d" % (bA, REGION, bA))
        a("s_mov_b64 exec, 0xffff")
        a("global_store_dwordx2 v%d, %s, %s sc1" % (bB, vr(bD, 2), sp(sWS)))
        a("s_mov_b64 exec, -1")
    if pfpos == 0:
        b_prefill()
    a("v_mov_b32 v%d, 1" % vINI)
    a("s_mov_b32 s%d, s%d" % (sX_ := 94, sSPLIT))
    if nopref:
        a("s_or_b32 s94, s94, 64")
    a("s_cmp_lg_u32 s94, 0")
    a("s_cbranch_scc1 L_b_noel")
    a("s_mov_b64 exec, 1")
    a("global_atomic_add v%d, v%d, v%d, %s sc0" % (vINI, vLA, vONE, sp(sDBG)))
    a("s_mov_b64 exec, -1")
    a.label("L_b_noel")
    for i in range(8):
        a("s_mov_b32 s%d, 0" % (sCNT + i))
    a("s_waitcnt lgkmcnt(0)")
    ctx_norm()
    for r in range(8):
        hf = r >> 2
        if r == 0:
            a("s_waitcnt vmcnt(%d)" % (9 if pfpos == 0 else 0))
            stamp(2)
            if pfpos == 1:
                b_prefill()
        ID = lambda b: E(r, b)
        CW = lambda b: E(r, b) + 1
        for b in range(4):
            a("s_sub_u32 s3, s%d, %d" % (sCE + b, r * 1024))
            a("v_sub_u32 v%d, s3, v%d" % (bNV + b, bL16))
            a("v_med3_i32 v%d, v%d, 0, 16" % (bNV + b, bNV + b))
        for b in range(4):
            a("v_cmp_lt_u32 %s, 0, v%d" % (sp(sVm[b]), bNV + b))
        for b in range(1, 4):
            a("v_lshlrev_b32 v%d, %d, v%d" % (bNV + b, 8 * b, bNV + b))
        for b in range(4):
            a("v_cmp_gt_i32 vcc, 0, v%d" % ID(b))
            a("v_add_u32 v%d, 1280, v%d" % (bT0, ID(b)))
            a("v_cndmask_b32 v%d, v%d, v%d, vcc" % (ID(b), ID(b), bT0))
            a("v_min_u32 v%d, 1279, v%d" % (ID(b), ID(b)))
        for (x, y), s in sE.items():
            a("v_cmp_eq_u32 %s, v%d, v%d" % (sp(s), ID(x), ID(y)))
        for x in range(4):
            first = True
            for y in range(x + 1, 4):
                a("v_cndmask_b32 v%d, 0, v%d, %s" % (bT0, bNV + y, sp(sE[(x, y)])))
                a("v_or_b32 v%d, v%d, v%d" % (CW(x), bT0, bNV + x if first else CW(x)))
                first = False
            if first:
                a("v_or_b32 v%d, %d, v%d" % (CW(x), x << 5, bNV + x))
        for y in range(1, 4):
            for x in range(y):
                a("s_and_b64 %s, %s, %s" % (sp(sT), sp(sVm[x]), sp(sE[(x, y)])))
                src = sp(sVm[y]) if x == 0 else sp(sLd[y])
                a("s_andn2_b64 %s, %s, %s" % (sp(sLd[y]), src, sp(sT)))
        for x in range(3):
            for y in range(x + 1, 4):
                if y == x + 1:
                    a("s_and_b64 %s, %s, %s" % (sp(sM[x]), sp(sE[(x, y)]), sp(sVm[y])))
                else:
                    a("s_and_b64 %s, %s, %s" % (sp(sT), sp(sE[(x, y)]), sp(sVm[y])))
                    a("s_or_b64 %s, %s, %s" % (sp(sM[x]), sp(sM[x]), sp(sT)))
        for x in range(3):
            a("v_mov_b32 v%d, %d" % (bT0, x << 5))
            a("v_mov_b32 v%d, %d" % (bT1, 4 << 5))
            a("v_cndmask_b32 v%d, v%d, v%d, %s" % (bT0, bT0, bT1, sp(sM[x])))
            a("v_or_b32 v%d, v%d, v%d" % (CW(x), CW(x), bT0))
        for x in range(4):
            a("v_lshlrev_b32 v%d, 17, v%d" % (ID(x), ID(x)))
            a("v_cndmask_b32 v%d, 0, v%d, %s" % (CW(x), CW(x), sp(sLd[x])))
            a("s_bcnt1_i32_b64 s3, %s" % sp(sLd[x]))
            a("s_add_u32 s%d, s%d, s3" % (sCNT + hf * 4 + x, sCNT + hf * 4 + x))
    stamp(3)
    if pfpos == 2:
        b_prefill()
    a("s_mov_b32 s4, 0")
    for c in range(8):
        a("s_mov_b32 s3, s%d" % (sCNT + c))
        a("s_mov_b32 s%d, s4" % (sCNT + c))
        a("s_add_u32 s4, s4, s3")
    a("s_add_u32 s95, s4, 1")
    for r in range(8):
        hf = r >> 2
        for b in range(4):
            c = sCNT + hf * 4 + b
            a("v_cmp_ne_u32 %s, 0, v%d" % (sp(sT), E(r, b) + 1))
            a("v_mbcnt_lo_u32_b32 v%d, s%d, 0" % (bT0, sT))
            a("v_mbcnt_hi_u32_b32 v%d, s%d, v%d" % (bT0, sT + 1, bT0))
            a("v_add_lshl_u32 v%d, v%d, s%d, 3" % (bT0, bT0, c))
            a("s_bcnt1_i32_b64 s3, %s" % sp(sT))
            a("s_mov_b64 exec, %s" % sp(sT))
            a("ds_write_b64 v%d, %s offset:%d" % (bT0, vr(E(r, b), 2), L_LIST))
            a("s_mov_b64 exec, -1")
            a("s_add_u32 s%d, s%d, s3" % (c, c))
    if slowb:
        a("s_mov_b32 s3, %d" % slowb)
        a.label("L_b_delay")
        a("s_sub_u32 s3, s3, 1")
        a("s_cmp_lg_u32 s3, 0")
        a("s_cbranch_scc1 L_b_delay")
    a("v_mov_b32 v%d, s95" % bT1)
    a("s_waitcnt vmcnt(0) lgkmcnt(0)")
    a("ds_write_b32 v%d, v%d offset:%d" % (vZ, bT1, L_FLAG))
    if tail2:
        a("s_mov_b64 exec, 1")
        a("global_atomic_add v%d, v%d, %s offset:4" % (vLA, vONE, sp(sDBG)))
        a("s_mov_b64 exec, -1")
    stamp(4)
    a("v_readfirstlane_b32 s3, v%d" % vINI)
    a("s_and_b32 s3, s3, 0xffff")
    a("s_cmp_lg_u32 s3, 0")
    a("s_cbranch_scc1 L_b_end")
    a("s_lshl_b32 s3, s%d, 11" % sHG)
    a("s_add_u32 s3, s3, 0x%x" % CTR_OFF)
    a("v_lshlrev_b32 v%d, 8, v%d" % (bT0, vLANE))
    a("v_add_u32 v%d, s3, v%d" % (bT0, bT0))
    a("v_mov_b32 v%d, 0" % bT1)
    a("s_mov_b64 exec, 0xff")
    a("global_atomic_swap v%d, v%d, v%d, %s sc0" % (bNV, bT0, bT1, sp(sWS)))
    a("s_waitcnt vmcnt(0)")
    a("v_mov_b32 v%d, 0x10000" % bT1)
    a("s_mov_b64 exec, 1")
    a("global_atomic_add v%d, v%d, %s" % (vLA, bT1, sp(sDBG)))
    a("s_mov_b64 exec, -1")
    a.label("L_b_end")
    if hst == 2:
        a("s_not_b32 s3, s100")
        a("v_mov_b32 v%d, s3" % bT0)
        a("v_mov_b32 v%d, 8" % bT1)
        a("s_mov_b64 exec, 1")
        a("global_atomic_umax v%d, v%d, %s" % (bT1, bT0, sp(sDBG)))
    if stamps:
        a("s_mov_b32 s%d, 0" % sN)
        def sl2():
            a("s_add_u32 s3, s2, 1024")
        stamps_out(sl2)
    a("s_waitcnt lgkmcnt(0)")
    if warm:
        a("s_waitcnt vmcnt(0)")
        a("s_mov_b64 exec, 0")
        a("s_branch L_wp0")
    else:
        a("s_endpgm")
    a.label("L_code_end")

    body = a.text()
    hdr = HEADER + "; @launch grid=(256,1,1) block=(320,1,1) lds=%d\n" % LDS_BYTES
    nvv = (NV + 3) // 4 * 4
    tail = """.section .rodata,"a"
.p2align 6
.amdhsa_kernel %s_kernel
  .amdhsa_next_free_vgpr %d
  .amdhsa_next_free_sgpr %d
  .amdhsa_accum_offset %d
  .amdhsa_group_segment_fixed_size 0
  .amdhsa_kernarg_size 64
  .amdhsa_user_sgpr_count 2
  .amdhsa_user_sgpr_kernarg_segment_ptr 1
  .amdhsa_system_sgpr_workgroup_id_x 1
.end_amdhsa_kernel
""" % (NAME, nvv, 102, nvv)
    if warm:
        from warmpass import warm as warmfn
        t, n = warmfn(hdr + body + tail, warm)
        sys.stderr.write("warm pads: %d\n" % n)
        return t
    return hdr + body + tail


if __name__ == "__main__":
    ap = argparse.ArgumentParser()
    ap.add_argument("-D", type=int, default=3)
    ap.add_argument("--ld", default="nt")
    ap.add_argument("--fnum", type=int, default=4)
    ap.add_argument("--stamps", type=int, default=0)
    ap.add_argument("--nopref", type=int, default=0)
    ap.add_argument("--prio", type=int, default=0)
    ap.add_argument("--nl", type=int, default=None)
    ap.add_argument("--slowb", type=int, default=0)
    ap.add_argument("--qpos", type=int, default=0)
    ap.add_argument("--bdelay", type=int, default=0)
    ap.add_argument("--pfpos", type=int, default=0)
    ap.add_argument("--warm", type=int, default=0)
    ap.add_argument("--tail2", type=int, default=0)
    ap.add_argument("--tail3", type=int, default=0)
    ap.add_argument("--psets", type=int, default=1)
    ap.add_argument("--pslp", type=int, default=0)
    ap.add_argument("--tlbw", type=int, default=0)
    ap.add_argument("--lead", type=int, default=0)
    ap.add_argument("--deep", type=int, default=0)
    ap.add_argument("--hst", type=int, default=0)
    ap.add_argument("--cnt", type=int, default=0)
    ap.add_argument("--tab", type=int, default=0)
    ap.add_argument("--thr", type=int, default=0)
    ap.add_argument("--thr7", type=int, default=0)
    ap.add_argument("--ldspad", type=int, default=84 * 1024)
    ap.add_argument("-o", required=True)
    args = ap.parse_args()
    open(args.o, "w").write(gen(args.D, args.ld, args.fnum, args.stamps, args.ldspad, args.nopref, args.prio, args.nl, 4, args.slowb, args.qpos, args.bdelay, args.warm, args.pfpos, args.tail2, args.tail3, args.psets, args.pslp, args.tlbw, args.lead, args.deep, args.hst, args.cnt, args.tab, args.thr, args.thr7))
```
